```python
import torch

def _softmax(x, axis=-1):
    return torch.softmax(x, dim=axis)
def _gelu(x):
    return torch.nn.functional.gelu(x, approximate="tanh")
def _silu(x):
    return torch.nn.functional.silu(x)
def _sigmoid(x):
    return torch.sigmoid(x)
def _layernorm(x, axis=-1, eps=1e-5):
    m = x.mean(dim=axis, keepdim=True)
    v = x.var(dim=axis, keepdim=True, unbiased=False)
    return (x - m) / torch.sqrt(v + eps)
def _scatter_add(tgt, idx, src, axis=0):
    return tgt.clone().index_add_(axis, idx, src)
def _segment_sum(src, seg, n):
    out = torch.zeros((n,) + src.shape[1:], dtype=src.dtype)
    return out.index_add_(0, seg, src)
def _pad(x, pw):
    flat = tuple(v for pair in reversed(pw) for v in pair)
    return torch.nn.functional.pad(x, flat)

kernel_name = 'concat_heads__ssm_conv_s4__grouped_kv_mqa__prompt'

def setup_inputs():

    _w = (lambda a: (lambda t: t.to(torch.bfloat16) if t.is_floating_point() else t)(torch.as_tensor(a)))
    def _A_setup():
        B, L, D, N = 1, 2048, 576, 128
        A_re = -(lambda _x: torch.exp(torch.as_tensor(_x)))((lambda *s: torch.randn(*s, dtype=torch.bfloat16) * 3.2)(D, N))
        A_im = torch.pi * (lambda *s: torch.randn(*s, dtype=torch.bfloat16) * 0.05)(D, N)
        B_re = (lambda *s: torch.randn(*s, dtype=torch.bfloat16) * 0.1)(D, N)
        B_im = (lambda *s: torch.randn(*s, dtype=torch.bfloat16) * 0.1)(D, N)
        C_re = (lambda *s: torch.randn(*s, dtype=torch.bfloat16) * 0.1)(D, N)
        C_im = (lambda *s: torch.randn(*s, dtype=torch.bfloat16) * 0.1)(D, N)
        log_dt = (lambda *s: torch.randn(*s, dtype=torch.bfloat16) * 0.05)(D) * 0.5 - 4.0
        Dskip = (lambda *s: torch.randn(*s, dtype=torch.bfloat16) * 0.05)(D)
        return {
            "u": _w((lambda *s: torch.randn(*s, dtype=torch.bfloat16) * 0.05)(B, L, D)),
            "A_re": _w(A_re),
            "A_im": _w(A_im),
            "B_re": _w(B_re),
            "B_im": _w(B_im),
            "C_re": _w(C_re),
            "C_im": _w(C_im),
            "log_dt": _w(log_dt),
            "Dskip": _w(Dskip),
        }
    _A_in = _A_setup()

    def _B_setup():
        B, S, D, H = 1, 2048, 576, 32
        Dh = D // H
        return {
            "x": _w((lambda *s: torch.randn(*s, dtype=torch.bfloat16) * 0.05)(B, S, D)),
            "wq": _w((lambda *s: torch.randn(*s, dtype=torch.bfloat16) * 0.8)(D, H * Dh)),
            "wk": _w((lambda *s: torch.randn(*s, dtype=torch.bfloat16) * 0.8)(D, Dh)),
            "wv": _w((lambda *s: torch.randn(*s, dtype=torch.bfloat16) * 0.05)(D, Dh)),
            "wo": _w((lambda *s: torch.randn(*s, dtype=torch.bfloat16) * 0.05)(H * Dh, D)),
        }
    _B_in = _B_setup()

    return {
        "A_u": _A_in["u"],
        "A_A_re": _A_in["A_re"],
        "A_A_im": _A_in["A_im"],
        "A_B_re": _A_in["B_re"],
        "A_B_im": _A_in["B_im"],
        "A_C_re": _A_in["C_re"],
        "A_C_im": _A_in["C_im"],
        "A_log_dt": _A_in["log_dt"],
        "A_Dskip": _A_in["Dskip"],
        "B_x": _B_in["x"],
        "B_wq": _B_in["wq"],
        "B_wk": _B_in["wk"],
        "B_wv": _B_in["wv"],
        "B_wo": _B_in["wo"],
    }

def reference(A_u, A_A_re, A_A_im, A_B_re, A_B_im, A_C_re, A_C_im, A_log_dt, A_Dskip, B_x, B_wq, B_wk, B_wv, B_wo):
    def _A_ref(u, A_re, A_im, B_re, B_im, C_re, C_im, log_dt, Dskip):
        Bsz, L, D = u.shape
        dt = torch.exp(log_dt)[:, None]
        A = A_re + 1j * A_im
        Bc = B_re + 1j * B_im
        Cc = C_re + 1j * C_im
        logdA = dt * A
        dB = dt * Bc
        l = (lambda x, dt: x.to(dt))(torch.arange(L), A_re.dtype)
        P = torch.exp(logdA[:, :, None] * l[None, None, :])
        K = torch.einsum("dn,dnl,dn->dl", Cc, P, dB).real
        L2 = 2 * L
        Kp = _pad(K, ((0, 0), (0, L)))
        up = (lambda x, *d: x.permute(*d))(u, 0, 2, 1)
        up = _pad(up, ((0, 0), (0, 0), (0, L)))
        Kf = (lambda x, axes=(-2,-1): torch.fft.rfft2(x.float(), dim=axes))(Kp[:, None, :], axes=(-2, -1))
        Uf = (lambda x, axes=(-2,-1): torch.fft.rfft2(x.float(), dim=axes))(up[:, :, None, :], axes=(-2, -1))
        Yf = Uf * Kf[None, :, :, :]
        y = (lambda x, s, axes=(-2,-1): torch.fft.irfft2(x, s=s, dim=axes).to(torch.bfloat16))(Yf, (1, L2), axes=(-2, -1))[:, :, 0, :L]
        y = (lambda x, *d: x.permute(*d))(y, 0, 2, 1) + u * Dskip[None, None, :]
        return y

    def _B_ref(x, wq, wk, wv, wo):
        B, S, D = x.shape
        H = 32
        Dh = D // H
        q = (lambda x, *d: x.permute(*d))((x @ wq).reshape(B, S, H, Dh), 0, 2, 1, 3)
        k = x @ wk
        v = x @ wv
        scores = torch.einsum("bhqd,bkd->bhqk", q, k) * (Dh ** -0.5)
        p = _softmax(scores, axis=-1)
        o = torch.einsum("bhqk,bkd->bhqd", p, v)
        return (lambda x, *d: x.permute(*d))(o, 0, 2, 1, 3).reshape(B, S, H * Dh) @ wo

    a = _A_ref(A_u, A_A_re, A_A_im, A_B_re, A_B_im, A_C_re, A_C_im, A_log_dt, A_Dskip)
    b = _B_ref(B_x, B_wq, B_wk, B_wv, B_wo)
    return torch.concatenate([a, b], axis=-1)
```

```python
import re

TRANS = ("v_exp_f32", "v_log_f32", "v_rcp_f32", "v_rsq_f32", "v_sqrt_f32", "v_sin_f32", "v_cos_f32", "v_rcp_iflag_f32")
MFMA_PASSES = {
    "v_mfma_f32_32x32x16_bf16": 8,
    "v_mfma_f32_16x16x32_bf16": 4,
    "v_mfma_f32_32x32x4_2b_bf16": 16,
    "v_mfma_f32_32x32x8_bf16": 8,
}

def _regs(tok):
    tok = tok.strip()
    tok = tok.lstrip("-")
    m = re.match(r"^abs\((.*)\)$", tok) or re.match(r"^\|(.*)\|$", tok)
    if m: tok = m.group(1)
    m = re.match(r"^([vsa])\[(\d+):(\d+)\]$", tok)
    if m:
        return {(m.group(1), i) for i in range(int(m.group(2)), int(m.group(3)) + 1)}
    m = re.match(r"^([vsa])(\d+)$", tok)
    if m:
        return {(m.group(1), int(m.group(2)))}
    if tok in ("vcc", "vcc_lo", "vcc_hi"): return {("vcc", 0)}
    if tok in ("exec", "exec_lo", "exec_hi"): return {("exec", 0)}
    if tok == "m0": return {("m0", 0)}
    return set()

class Ins:
    def __init__(self, text):
        self.text = text
        t = text.split(";")[0].strip()
        parts = t.split(None, 1)
        self.op = parts[0]
        rest = parts[1] if len(parts) > 1 else ""
        ops, cur, depth = [], "", 0
        for ch in rest:
            if ch in "[(": depth += 1
            if ch in "])": depth -= 1
            if ch == "," and depth == 0:
                ops.append(cur.strip()); cur = ""
            else:
                cur += ch
        if cur.strip(): ops.append(cur.strip())
        if ops:
            last = ops[-1].split()
            ops[-1] = last[0]
            self.mods = last[1:]
        else:
            self.mods = []
        self.ops = ops
        op = self.op
        self.is_mfma = op.startswith("v_mfma")
        self.is_valu = op.startswith("v_") and not self.is_mfma
        self.is_trans = op.replace("_e32", "").replace("_e64", "") in TRANS
        self.is_salu = op.startswith("s_") and not op.startswith(("s_load", "s_waitcnt", "s_barrier", "s_nop", "s_sleep", "s_branch", "s_cbranch", "s_endpgm", "s_memtime", "s_memrealtime", "s_setprio"))
        self.is_ds = op.startswith("ds_")
        self.is_vmem = op.startswith(("buffer_", "global_"))
        self.is_lds_dma = self.is_vmem and ("lds" in self.mods or "_lds_" in op)
        W, R = set(), set()
        o = [_regs(x) for x in ops]
        if self.is_mfma:
            W |= o[0]; self.A, self.B, self.C = o[1], o[2], o[3]; R |= o[1] | o[2] | o[3]
        elif self.is_valu:
            if op.startswith("v_cmp"):
                W |= o[0]
                for x in o[1:]: R |= x
                if op.startswith("v_cmpx"): W |= {("exec", 0)}
            elif op.startswith(("v_readfirstlane", "v_readlane")):
                W |= o[0]
                for x in o[1:]: R |= x
            elif op.startswith(("v_permlane32_swap", "v_permlane16_swap", "v_swap")):
                W |= o[0] | o[1]; R |= o[0] | o[1]
            elif op.startswith(("v_add_co", "v_sub_co", "v_addc_co", "v_subb_co")):
                W |= o[0] | o[1]
                for x in o[2:]: R |= x
            else:
                W |= o[0]
                for x in o[1:]: R |= x
                if op.startswith(("v_fmac", "v_pk_fmac", "v_dot2c")) or "UNUSED_PRESERVE" in " ".join(self.mods): R |= o[0]
                if op.startswith("v_cndmask") and len(ops) == 3: R |= {("vcc", 0)}
        elif self.is_ds:
            if op.startswith(("ds_read", "ds_bpermute", "ds_permute", "ds_swizzle")) or "_rtn" in op:
                W |= o[0]
                for x in o[1:]: R |= x
            else:
                for x in o: R |= x
        elif self.is_vmem:
            if self.is_lds_dma:
                for x in o: R |= x
                R |= {("m0", 0)}
            elif "_load" in op:
                W |= o[0]
                for x in o[1:]: R |= x
            else:
                for x in o: R |= x
                if "atomic" in op and "sc0" in self.mods: W |= o[0]
        elif op.startswith("s_"):
            if op.startswith(("s_cmp", "s_bitcmp")):
                for x in o: R |= x
            elif op.startswith(("s_load", "s_memtime", "s_memrealtime")):
                W |= o[0]
                for x in o[1:]: R |= x
            elif self.is_salu:
                if o: W |= o[0]
                for x in o[1:]: R |= x
                if "saveexec" in op: W |= {("exec", 0)}
        self.W, self.R = W, R
        self.states = 1
        if op == "s_nop": self.states = int(ops[0], 0) + 1

def need(prod, cons):
    n = 0
    vW = {r for r in prod.W if r[0] in "va"}
    sW = {r for r in prod.W if r[0] in ("s", "vcc")}
    if prod.is_valu:
        if cons.is_mfma and (vW & cons.R): n = max(n, 2)
        if cons.op.startswith(("v_readfirstlane", "v_readlane")) and (vW & cons.R): n = max(n, 1)
        if cons.op.startswith("v_permlane") and (vW & cons.R): n = max(n, 2)
        if ("dpp" in cons.op or any(m.startswith(("row_", "quad_perm", "wave_")) for m in cons.mods)) and (vW & cons.R): n = max(n, 2)
        if prod.is_trans and (cons.is_valu and not cons.is_trans or cons.is_mfma) and (vW & cons.R): n = max(n, 1)
        if prod.is_trans and (cons.is_ds or cons.is_vmem) and (vW & cons.R): n = max(n, 1)
        if sW and cons.is_valu and (sW & cons.R): n = max(n, 2)
        if sW and cons.op.startswith(("v_readlane", "v_writelane")) and (sW & cons.R): n = max(n, 4)
        if sW and cons.is_vmem and (sW & cons.R): n = max(n, 5)
        if ("exec", 0) in prod.W and (cons.is_mfma or cons.op.startswith(("v_readlane", "v_readfirstlane", "v_permlane"))): n = max(n, 4)
        if ("sdwa" in prod.op or any(m.startswith("op_sel") for m in prod.mods) and not prod.op.startswith("v_pk")) and cons.is_valu and (vW & (cons.R | cons.W)): n = max(n, 1)
    if prod.is_salu and ("m0", 0) in prod.W and ("m0", 0) in cons.R: n = max(n, 1)
    if prod.is_mfma:
        p = MFMA_PASSES[prod.op]
        D = prod.W
        if cons.is_mfma:
            if D & (cons.A | cons.B): n = max(n, {4: 8, 8: 12, 16: 20}[p])
            if D & cons.C:
                if cons.C == D and MFMA_PASSES[cons.op] == p: n = max(n, 0)
                else: n = max(n, {4: 6, 8: 10, 16: 18}[p])
            elif D & cons.W:
                n = max(n, {4: 6, 8: 10, 16: 18}[p])
        elif (cons.is_valu or cons.is_ds or cons.is_vmem) and (D & (cons.R | cons.W)):
            n = max(n, {4: 8, 8: 12, 16: 20}[p])
        if cons.is_valu and (prod.C & cons.W): n = max(n, {4: 3, 8: 7, 16: 15}[p])
    if prod.is_vmem and re.search(r"store_dwordx[34]", prod.op) and cons.is_valu:
        data = _regs(prod.ops[0] if prod.op.startswith("buffer") else prod.ops[1])
        if data & cons.W: n = max(n, 2)
    return n

class Asm:
    def __init__(self):
        self.lines = []
        self.uid = 0
    def __call__(self, text):
        for l in text.strip("\n").split("\n"):
            l = l.strip()
            if l: self.lines.append("    " + l if not l.endswith(":") else l)
    def label(self, name):
        self.lines.append(name + ":")
    def newlabel(self, p="L"):
        self.uid += 1
        return f"{p}_{self.uid}"
    def raw(self, s):
        self.lines.append(s)
    def text(self):
        return "\n".join(self.lines) + "\n"

def check_hazards(lines, maxdist=24, verbose=True):
    items = []
    labels = {}
    for l in lines:
        s = l.split(";")[0].strip()
        if not s or s.startswith("."): continue
        if s.endswith(":"):
            labels[s[:-1]] = len(items); continue
        items.append(Ins(s))
    probs = []
    n = len(items)
    def succ(i):
        ins = items[i]
        if ins.op == "s_endpgm": return []
        if ins.op == "s_branch": return [labels[ins.ops[0]]] if ins.ops[0] in labels else []
        if ins.op.startswith("s_cbranch"):
            r = [i + 1] if i + 1 < n else []
            if ins.ops[0] in labels: r.append(labels[ins.ops[0]])
            return r
        return [i + 1] if i + 1 < n else []
    for i, p in enumerate(items):
        if not (p.is_valu or p.is_mfma or p.is_salu or p.is_vmem): continue
        stack = [(j, 0) for j in succ(i)]
        seen = {}
        while stack:
            j, d = stack.pop()
            if j >= n or d >= maxdist: continue
            if seen.get(j, 99) <= d: continue
            seen[j] = d
            c = items[j]
            k = need(p, c)
            if k > d:
                probs.append((i, j, k, d, p.text, c.text))
            for t in succ(j):
                stack.append((t, d + c.states))
    if verbose:
        for (i, j, k, d, a, b) in probs:
            print(f"HAZARD need {k} have {d}:\n    [{i}] {a}\n    [{j}] {b}")
    return probs
```

```python
KV_K2 = 8192; KV_V = 10240; VT_TILE = 1216
def vr(b, n=1):
    return f"v{b}" if n == 1 else f"v[{b}:{b+n-1}]"
def k1off(p, t): return (2 * p + t) * 1024
def k2off(p): return KV_K2 + (p >> 1) * 1024
def voff(p, i): return (2 * p + (i >> 1)) * VT_TILE + (i & 1) * 608

class R: pass

def qk(a, r, S, k2half, part):
    if part == 0: a(f"v_mfma_f32_32x32x16_bf16 {vr(S,16)}, {vr(r.K1a,4)}, {vr(r.Q1,4)}, 0")
    if part == 1: a(f"v_mfma_f32_32x32x16_bf16 {vr(S+16,16)}, {vr(r.K1b,4)}, {vr(r.Q1,4)}, 0")
    if part == 2: a(f"v_mfma_f32_32x32x4_2b_bf16 {vr(S,32)}, {vr(r.K2+2*k2half,2)}, {vr(r.Q2,2)}, {vr(S,32)}")

SCHED = {
 "a": "W2 H M1 E0-5 P3 E6-7 C0-3 E8-9 M2 E10-15 P0 C4-7 E16-19 M3 E20-23 C8-11 E24-26 W4 P1 E27-31 P2 C12-15",
 "b": "W2 H M1 E0-3 P3 E4-7 M2 C0-3 E8-11 P0 E12-15 C4-7 M3 E16-23 W4 P1 C8-11 E24-27 P2 E28-31 C12-15",
 "c": "W2 H M1 P3 E0-7 C0-3 M2 P0 E8-15 C4-7 M3 E16-23 C8-11 W4 P1 P2 E24-31 C12-15",
 "d": "W2 H M1 E0-4 M2x E5-7 C0-3 E8-9 P0 E10-15 M3 C4-7 E16-21 P1 E22-23 C8-11 E24-25 P2 E26-31 C12-15 N1 P3c",
}

def emit_pair(a, r, p, sched, hook=None):
    cur, nxt = (r.SA, r.SB) if p % 2 == 0 else (r.SB, r.SA)
    V = r.V
    def E(lo, hi):
        for i in range(lo, hi + 1): a(f"v_exp_f32 v{cur+i}, v{cur+i}")
    def C(lo, hi):
        for i in range(lo, hi + 1):
            k = i >> 2; j = i & 3
            a(f"v_cvt_pk_bf16_f32 v{cur+8*k+j}, v{cur+8*k+2*j}, v{cur+8*k+2*j+1}")
    def PV(i, S):
        a(f"v_mfma_f32_32x32x16_bf16 {vr(r.O,16)}, {vr(V[i],4)}, {vr(S+8*i,4)}, {vr(r.O,16)}")
    def ldK(t):
        pp = p + 2
        a(f"ds_read_b128 {vr(r.K1a if t == 0 else r.K1b,4)}, v{r.vKc if pp < 4 else r.vKn} offset:{k1off(pp & 3, t)}")
    def ldV(i, pp):
        a(f"ds_read_b128 {vr(V[i],4)}, v{r.vVc if pp < 4 else r.vVn} offset:{voff(pp & 3, i)}")
    for tok in SCHED[sched].split():
        if tok[0] == "W": a(f"s_waitcnt lgkmcnt({tok[1:]})")
        elif tok == "H":
            if hook: hook(p)
        elif tok[0] == "N": a(f"s_nop {tok[1:]}")
        elif tok == "M1": qk(a, r, nxt, 0, 0); ldK(0)
        elif tok in ("M2", "M2x"): qk(a, r, nxt, 0, 1); ldK(1)
        elif tok == "M3":
            qk(a, r, nxt, (p + 1) & 1, 2)
            if p % 2 == 0:
                pp = p + 2
                a(f"ds_read_b128 {vr(r.K2,4)}, v{r.vKc if pp < 4 else r.vKn} offset:{k2off(pp & 3)}")
        elif tok == "P3": PV(3, nxt); ldV(3, p)
        elif tok == "P3c": PV(3, cur); ldV(3, p + 1)
        elif tok[0] == "P": i = int(tok[1]); PV(i, cur); ldV(i, p + 1)
        elif tok[0] in "EC":
            lo, hi = map(int, tok[1:].split("-"))
            (E if tok[0] == "E" else C)(lo, hi)
        else: raise ValueError(tok)
```

```python
import attn_loop as AL
def gen_main(a, G):
    globals().update({k: v for k, v in G.items() if not k.startswith("__")})
    C_XRDY, C_KVDONE, C_PUB, C_QDONE, C_KVGO, C_UT, C_R0DONE = 0, 4, 8, 12, 16, 20, 24
    C_FULL = 32
    C_FREE = 72
    C_WR = 112
    P_U, P_ARE, P_AIM, P_BRE, P_BIM, P_CRE, P_CIM, P_LDT, P_DSK, P_X, P_WQ, P_WK, P_WV, P_WO, P_OUT, P_DBG, P_WS = range(16, 50, 2)
    S_X, S_WQ, S_WKV, S_U, S_WS, S_DBG = 52, 56, 60, 64, 68, 72
    s_wv, s_b, s_g, s_k9 = 76, 77, 78, 79
    s_t = 80
    s_c, s_xo, s_col, s_tbl = 90, 91, 92, 93
    s_selA, s_selB = 94, 95
    s_st = 96
    vLane, vZero, vOne, vT = 1, 2, 3, 4

    def stamp(idx):
        if not PROF: return
        a(f"""s_memrealtime s[{s_st}:{s_st+1}]
        s_mul_i32 s{s_st+2}, s2, 12
        s_add_u32 s{s_st+2}, s{s_st+2}, s{s_wv}
        s_lshl_b32 s{s_st+2}, s{s_st+2}, 6
        s_add_u32 s{s_st+2}, s{s_st+2}, {WS_PROF + 4*idx}
        s_waitcnt lgkmcnt(0)
        v_mov_b32 v167, s{s_st}
        s_mov_b64 exec, 1
        buffer_store_dword v167, v{vZero}, {sr(S_WS,4)}, s{s_st+2} offen
        s_mov_b64 exec, -1""")
    def arrive(ctr, vaddr=None):
        a(f"""s_mov_b64 exec, 1
        ds_add_u32 v{vaddr if vaddr is not None else vZero}, v{vOne} offset:{ctr}
        s_mov_b64 exec, -1""")
    def wait_ge(ctr, target, vtmp=vT, stmp=s_t, vaddr=None, sleep=1):
        L = a.newlabel("W"); D = a.newlabel("WD")
        a("s_mov_b32 s99, 0x80000")
        a.label(L)
        a(f"""ds_read_b32 v{vtmp}, v{vaddr if vaddr is not None else vZero} offset:{ctr}
        s_waitcnt lgkmcnt(0)
        v_readfirstlane_b32 s{stmp}, v{vtmp}
        s_cmp_ge_u32 s{stmp}, {target}
        s_cbranch_scc1 {D}
        s_sleep {sleep}
        s_sub_u32 s99, s99, 1
        s_cmp_lg_u32 s99, 0
        s_cbranch_scc1 {L}""")
        a.label(D)

    a.raw(".p2align 8")
    a.label("main_kernel")
    a(f"""s_cmp_ge_u32 s2, 256
    s_cbranch_scc1 MAIN_END
    s_load_dwordx16 s[16:31], s[0:1], 0
    s_load_dwordx16 s[32:47], s[0:1], 64
    s_load_dwordx2 s[48:49], s[0:1], 128
    v_lshrrev_b32 v{vT}, 6, v0
    v_and_b32 v{vLane}, 63, v0
    v_readfirstlane_b32 s{s_wv}, v{vT}
    v_mov_b32 v{vZero}, 0
    v_mov_b32 v{vOne}, 1""")
    decode_wg(a, s_b, s_g, s_t)
    a(f"""s_cmp_lg_u32 s{s_wv}, 0
    s_cbranch_scc1 M_NOINIT
    v_lshlrev_b32 v{vT}, 2, v{vLane}
    v_cmp_eq_u32 vcc, {(C_FULL+32)//4}, v{vLane}
    s_nop 1
    v_cndmask_b32 v{vT+1}, 0, v{vOne}, vcc
    v_lshlrev_b32 v{vT+1}, 3, v{vT+1}
    ds_write_b32 v{vT}, v{vT+1}""")
    a.label("M_NOINIT")
    a(f"""s_mov_b32 s{s_selA}, 0x05040100
    s_mov_b32 s{s_selB}, 0x07060302
    s_waitcnt lgkmcnt(0)
    s_barrier""")
    srd(a, S_WS, P_WS, WS_SIZE)
    srd(a, S_DBG, P_DBG, 256)
    stamp(0)
    a(f"""s_cmp_lt_u32 s{s_wv}, 8
    s_cbranch_scc1 M_DMA
    s_cmp_lt_u32 s{s_wv}, 11
    s_cbranch_scc1 M_SSM""")
    vTr, vXA = 8, 10
    FR, ACC = 16, 132
    a.label("M_DMA")
    srd(a, S_X, P_X, 2048 * 1152)
    srd(a, S_WQ, P_WQ, 576 * 1152)
    a(f"""s_min_u32 s{s_k9}, s{s_wv}, 8
    s_cmp_ge_u32 s{s_wv}, 8
    s_cbranch_scc1 M_NOX
    s_mul_i32 s{s_xo}, s{s_b}, {64*1152}""")
    proj_issue_x(a, S_X, s_xo, s_wv, vLane, vT, s_t)
    a.label("M_NOX")
    a(f"""s_cmp_ge_u32 s{s_g}, 2
    s_cbranch_scc1 M_NOKV""")
    a(f"""s_cmp_eq_u32 s{s_g}, 0
    s_cselect_b32 s{S_WKV}, s{P_WK}, s{P_WV}
    s_cselect_b32 s{S_WKV+1}, s{P_WK+1}, s{P_WV+1}
    s_and_b32 s{S_WKV+1}, s{S_WKV+1}, 0xffff
    s_mov_b32 s{S_WKV+2}, {576*36}
    s_mov_b32 s{S_WKV+3}, 0x00020000
    s_lshl_b32 s{s_t}, s{s_k9}, 6
    v_add_u32 v{vT}, s{s_t}, v{vLane}              ; id
    v_mul_u32_u24 v{vT+1}, 21846, v{vT}
    v_lshrrev_b32 v{vT+1}, 16, v{vT+1}
    v_mul_u32_u24 v{vT+2}, 3, v{vT+1}
    v_sub_u32 v{vT+2}, v{vT}, v{vT+2}
    v_and_b32 v{vT}, 1, v{vT+1}                    ; rd
    v_bfe_u32 v{vT+3}, v{vT+1}, 1, 2               ; r
    v_lshl_add_u32 v{vT}, v{vT}, 2, v{vT+3}
    v_and_b32 v{vT+1}, 0xf8, v{vT+1}
    v_add_u32 v{vT+1}, v{vT+1}, v{vT}
    v_mul_u32_u24 v{vT}, 36, v{vT+1}
    v_lshl_add_u32 v{vT}, v{vT+2}, 4, v{vT}
    s_lshl_b32 s{s_t+1}, s{s_k9}, 10""")
    for j in range(3):
        a(f"""s_add_u32 m0, s{s_t+1}, {Z_B + j*9*1024}
        s_mov_b32 s{s_t}, {j*192*36}
        buffer_load_dwordx4 v{vT}, {sr(S_WKV,4)}, s{s_t} offen lds""")
    a(f"""s_cmp_ge_u32 s{s_wv}, 8
    s_cbranch_scc0 M_KVA
    s_waitcnt vmcnt(0)""")
    arrive(C_XRDY)
    a("s_branch M_KVW")
    a.label("M_KVA")
    vXk, vWk, vSt = 8, 10, 11
    KF, KACC = 16, 64
    a(f"""v_and_b32 v{vT}, 15, v{vLane}                ; n
    v_lshrrev_b32 v{vT+1}, 4, v{vLane}             ; kg
    v_bfe_u32 v{vT+2}, v{vLane}, 1, 3              ; key
    v_xor_b32 v{vT+2}, v{vT+2}, v{vT+1}
    s_lshr_b32 s{s_t}, s{s_wv}, 1
    s_lshl_b32 s{s_t}, s{s_t}, 11
    s_add_u32 s{s_t}, s{s_t}, {X_B}
    v_lshlrev_b32 v{vT+3}, 7, v{vT}
    v_add_u32 v{vT+3}, s{s_t}, v{vT+3}
    v_lshl_add_u32 v{vXk}, v{vT+2}, 4, v{vT+3}
    v_xor_b32 v{vT+2}, 4, v{vT+2}
    v_lshl_add_u32 v{vXk+1}, v{vT+2}, 4, v{vT+3}
    v_lshlrev_b32 v{vT+2}, 3, v{vT+1}
    v_bfe_u32 v{vT+3}, v{vLane}, 2, 2
    v_lshl_add_u32 v{vT+2}, v{vT+3}, 1, v{vT+2}
    v_mul_u32_u24 v{vT+2}, 48, v{vT+2}
    v_and_b32 v{vT+3}, 3, v{vLane}
    v_lshl_add_u32 v{vT+2}, v{vT+3}, 3, v{vT+2}
    s_and_b32 s{s_t}, s{s_wv}, 1
    s_lshl_b32 s{s_t}, s{s_t}, 5
    s_add_u32 s{s_t}, s{s_t}, {Z_B}
    v_add_u32 v{vWk}, s{s_t}, v{vT+2}
    s_lshl_b32 s{s_t+4}, s{s_b}, 1
    s_lshr_b32 s{s_t+5}, s{s_wv}, 2
    s_add_u32 s{s_t+4}, s{s_t+4}, s{s_t+5}         ; tile T
    s_lshr_b32 s{s_t+5}, s{s_t+4}, 3
    s_mul_i32 s{s_t+5}, s{s_t+5}, {CHUNK}
    s_add_u32 s{s_t+5}, s{s_t+5}, {WS_KV}
    s_and_b32 s{s_t+4}, s{s_t+4}, 7                ; tt
    s_bfe_u32 s{s_t+6}, s{s_wv}, 0x10001           ; j' = kg4&1
    s_waitcnt vmcnt(0)""")
    arrive(C_XRDY)
    wait_ge(C_XRDY, 9, vtmp=vSt)
    stamp(1)
    def kvtile(swap):
        D = 5
        def reads(S):
            f = KF + 8 * (S % 6)
            xo = (S >> 1) * 8192
            if S == 16: a(f"v_add_u32 v{vXk}, 8192, v{vXk}")
            if S == 17: a(f"v_add_u32 v{vXk+1}, 8192, v{vXk+1}")
            if S >= 16: xo -= 8192
            a(f"""ds_read_b64_tr_b16 {vr(f,2)}, v{vWk} offset:{(32*S)*48}
            ds_read_b64_tr_b16 {vr(f+2,2)}, v{vWk} offset:{(32*S+1)*48}
            ds_read_b128 {vr(f+4,4)}, v{vXk+(S&1)} offset:{xo}""")
        for S in range(D): reads(S)
        for S in range(18):
            a(f"s_waitcnt lgkmcnt({min(3*(D-1), 3*(17-S))})")
            f = KF + 8 * (S % 6)
            w, x = vr(f, 4), vr(f + 4, 4)
            A, B = (x, w) if swap else (w, x)
            c = "0" if S == 0 else vr(KACC, 4)
            a(f"v_mfma_f32_16x16x32_bf16 {vr(KACC,4)}, {A}, {B}, {c}")
            if S + D < 18: reads(S + D)
        arrive(C_KVDONE)
    a(f"""s_cmp_eq_u32 s{s_g}, 1
    s_cbranch_scc1 M_VT""")
    kvtile(False)
    a(f"""s_bitcmp1_b32 s{s_wv}, 0
    s_cbranch_scc1 M_K2
    v_lshrrev_b32 v{vT+2}, 1, v{vT+1}              ; h
    v_lshlrev_b32 v{vT+2}, 9, v{vT+2}
    v_lshl_add_u32 v{vT+2}, v{vT}, 4, v{vT+2}
    v_and_b32 v{vT+3}, 1, v{vT+1}
    v_lshl_add_u32 v{vSt}, v{vT+3}, 3, v{vT+2}
    s_lshl_b32 s{s_t}, s{s_t+4}, 10
    s_lshl_b32 s{s_t+1}, s{s_t+6}, 8
    s_add_u32 s{s_t}, s{s_t}, s{s_t+1}
    s_add_u32 s{s_t}, s{s_t}, s{s_t+5}
    v_cvt_pk_bf16_f32 v{KF}, v{KACC}, v{KACC+1}
    v_cvt_pk_bf16_f32 v{KF+1}, v{KACC+2}, v{KACC+3}
    buffer_store_dwordx2 {vr(KF,2)}, v{vSt}, {sr(S_WS,4)}, s{s_t} offen sc1
    s_branch M_KVW""")
    a.label("M_K2")
    a(f"""v_lshlrev_b32 v{vSt}, 4, v{vT}
    s_lshr_b32 s{s_t}, s{s_t+4}, 2
    s_lshl_b32 s{s_t}, s{s_t}, 10                  ; (pr>>1)*1024
    s_and_b32 s{s_t+1}, s{s_t+4}, 1
    s_lshl_b32 s{s_t+1}, s{s_t+1}, 9               ; blk*512
    s_add_u32 s{s_t}, s{s_t}, s{s_t+1}
    s_and_b32 s{s_t+1}, s{s_t+4}, 2
    s_lshl_b32 s{s_t+1}, s{s_t+1}, 2               ; (pr&1)*8
    s_add_u32 s{s_t}, s{s_t}, s{s_t+1}
    s_lshl_b32 s{s_t+1}, s{s_t+6}, 8
    s_add_u32 s{s_t}, s{s_t}, s{s_t+1}
    s_add_u32 s{s_t}, s{s_t}, s{s_t+5}
    s_add_u32 s{s_t}, s{s_t}, {KV_K2}
    v_cvt_pk_bf16_f32 v{KF}, v{KACC}, v{KACC+1}
    v_mov_b32 v{KF+1}, 0x3f803f80
    s_mov_b64 exec, 0xffff
    buffer_store_dwordx2 {vr(KF,2)}, v{vSt}, {sr(S_WS,4)}, s{s_t} offen sc1
    s_mov_b64 exec, -1
    s_branch M_KVW""")
    a.label("M_VT")
    kvtile(True)
    a(f"""s_and_b32 s{s_t}, s{s_wv}, 1
    s_lshl_b32 s{s_t}, s{s_t}, 4
    v_add_u32 v{vT}, s{s_t}, v{vT}                 ; dv
    v_mov_b32 v{vT+2}, 8
    v_add_u32 v{vT+3}, 1, v{vT}
    v_cmp_gt_u32 vcc, 18, v{vT}
    s_nop 1
    v_cndmask_b32 v{vT+2}, v{vT+2}, v{vT+3}, vcc
    v_subrev_u32 v{vT+3}, 8, v{vT}
    v_cmp_gt_u32 vcc, 16, v{vT}
    s_nop 1
    v_cndmask_b32 v{vT+2}, v{vT+2}, v{vT+3}, vcc
    v_add_u32 v{vT+3}, 5, v{vT}
    v_cmp_gt_u32 vcc, 12, v{vT}
    s_nop 1
    v_cndmask_b32 v{vT+2}, v{vT+2}, v{vT+3}, vcc
    v_cmp_gt_u32 vcc, 4, v{vT}
    s_nop 1
    v_cndmask_b32 v{vT+2}, v{vT+2}, v{vT}, vcc
    v_and_b32 v{vT+3}, 1, v{vT+1}
    v_mul_u32_u24 v{vT+3}, 304, v{vT+3}
    v_lshl_add_u32 v{vT+2}, v{vT+2}, 4, v{vT+3}
    v_lshrrev_b32 v{vT+3}, 1, v{vT+1}
    v_lshl_add_u32 v{vSt}, v{vT+3}, 3, v{vT+2}
    s_mul_i32 s{s_t}, s{s_t+4}, {VT_TILE}
    s_mul_i32 s{s_t+1}, s{s_t+6}, 608
    s_add_u32 s{s_t}, s{s_t}, s{s_t+1}
    s_add_u32 s{s_t}, s{s_t}, s{s_t+5}
    s_add_u32 s{s_t}, s{s_t}, {KV_V}
    v_cvt_pk_bf16_f32 v{KF}, v{KACC}, v{KACC+1}
    v_cvt_pk_bf16_f32 v{KF+1}, v{KACC+2}, v{KACC+3}
    v_mov_b32 v{vT+3}, 0x3f803f80
    v_cmp_eq_u32 vcc, 18, v{vT}
    s_nop 1
    v_cndmask_b32 v{KF}, v{KF}, v{vT+3}, vcc
    v_cndmask_b32 v{KF+1}, v{KF+1}, v{vT+3}, vcc
    v_cmp_gt_u32 vcc, 19, v{vT}
    s_and_b64 exec, exec, vcc
    buffer_store_dwordx2 {vr(KF,2)}, v{vSt}, {sr(S_WS,4)}, s{s_t} offen sc1
    s_mov_b64 exec, -1""")
    a.label("M_KVW")
    wait_ge(C_KVDONE, 8)
    a(f"""s_cmp_ge_u32 s{s_wv}, 8
    s_cbranch_scc1 M_NOKV
    s_waitcnt vmcnt(0)""")
    arrive(C_PUB)
    a.label("M_NOKV")
    proj_issue_w(a, S_WQ, s_g, s_k9, vLane, vT, s_t)
    a(f"""s_cmp_ge_u32 s{s_wv}, 8
    s_cbranch_scc1 M_LOADER""")
    stamp(2)
    a(f"""s_lshr_b32 s{s_t}, s{s_wv}, 1
    s_mul_i32 s{s_col}, s{s_t}, 36
    s_and_b32 s{s_t}, s{s_t}, 1
    s_lshl_b32 s{s_t+1}, s{s_t}, 2
    s_sub_u32 s{s_col}, s{s_col}, s{s_t+1}
    s_mov_b32 s{s_tbl}, {nib([0,2,1,3,2,4,4,4])}
    s_cmp_eq_u32 s{s_t}, 0
    s_cselect_b32 s{s_tbl}, {nib([0,2,1,3,4,4,0,0])}, s{s_tbl}""")
    proj_addrs(a, s_wv, vLane, vXA, vTr, vT, s_t, s_col, s_tbl)
    for rnd in range(3):
        a(f"s_waitcnt vmcnt({6-3*rnd})")
        arrive(C_WR + 4 * rnd)
        wait_ge(C_WR + 4 * rnd, 9)
        if rnd != 1: stamp(3 + rnd // 2)
        proj_round(a, rnd, vXA, vTr, FR, ACC)
        if rnd == 0: arrive(C_R0DONE)
    arrive(C_QDONE)
    r = AL.R()
    r.SA, r.SB, r.O = 8, 40, 72
    r.K1a, r.K1b, r.K2 = 88, 92, 96
    r.V = [100, 104, 108, 112]
    r.vKc, r.vKn, r.vVc, r.vVn = 116, 117, 118, 119
    vFl, vF, vVl = 120, 121, 122
    r.Q1, r.Q2 = 124, 128
    Q1, Q2, SA, SB, O, V = r.Q1, r.Q2, r.SA, r.SB, r.O, r.V
    a(f"""v_and_b32 v{vT+1}, 31, v{vLane}
    v_mov_b32 v{vT+2}, 8
    v_add_u32 v{vT+3}, 1, v{vT+1}
    v_cmp_gt_u32 vcc, 18, v{vT+1}
    s_nop 1
    v_cndmask_b32 v{vT+2}, v{vT+2}, v{vT+3}, vcc
    v_subrev_u32 v{vT}, 8, v{vT+1}
    v_cmp_gt_u32 vcc, 16, v{vT+1}
    s_nop 1
    v_cndmask_b32 v{vT+2}, v{vT+2}, v{vT}, vcc
    v_cmp_gt_u32 vcc, 12, v{vT+1}
    s_nop 1
    v_cndmask_b32 v{vT+2}, v{vT+2}, v{vT+3}, vcc
    v_add_u32 v{vT}, 9, v{vT+1}
    v_cmp_gt_u32 vcc, 8, v{vT+1}
    s_nop 1
    v_cndmask_b32 v{vT+2}, v{vT+2}, v{vT}, vcc
    v_cmp_gt_u32 vcc, 4, v{vT+1}
    s_nop 1
    v_cndmask_b32 v{vT+2}, v{vT+2}, v{vT+1}, vcc
    v_lshrrev_b32 v{vT+3}, 5, v{vLane}
    v_mul_u32_u24 v{vT+3}, 304, v{vT+3}
    v_lshl_add_u32 v{vVl}, v{vT+2}, 4, v{vT+3}
    v_add_u32 v{r.vVc}, {ATT_B+KV_V}, v{vVl}
    v_add_u32 v{r.vVn}, {CHUNK}, v{r.vVc}
    v_lshlrev_b32 v{r.vKc}, 4, v{vLane}
    v_add_u32 v{r.vKc}, {ATT_B}, v{r.vKc}
    v_add_u32 v{r.vKn}, {CHUNK}, v{r.vKc}
    v_mov_b32 v{vFl}, 0
    s_mov_b32 s{s_t}, {f32(QSCALE)}""")
    for i in range(16): a(f"v_mul_f32 v{ACC+i}, s{s_t}, v{ACC+i}")
    a(f"""s_bitcmp1_b32 s{s_wv}, 1
    s_cbranch_scc1 M_QODD""")
    for i in range(5): a(f"v_cvt_pk_bf16_f32 v{Q1+i}, v{ACC+2*i}, v{ACC+2*i+1}")
    a("s_branch M_QD")
    a.label("M_QODD")
    for i in range(4): a(f"v_cvt_pk_bf16_f32 v{Q1+i}, v{ACC+2*i+2}, v{ACC+2*i+3}")
    a(f"v_cvt_pk_bf16_f32 v{Q2}, v{ACC+14}, v{ACC+15}")
    a.label("M_QD")
    a(f"v_mov_b32 v{Q2+1}, 0")
    for i in range(16): a(f"v_mov_b32 v{O+i}, 0")
    for i in range(4):
        a(f"v_mov_b32 v{SB+24+i}, 0")
        a(f"v_mov_b32 v{V[3]+i}, 0")
    stamp(5)
    wait_ge(C_KVGO, 1)
    a(f"""v_lshlrev_b32 v{vT}, 4, v{vLane}
    s_lshl_b32 s{s_t}, s{s_wv}, 10""")
    for c in range(3):
        for i in range(3):
            if i < 2:
                a(f"s_add_u32 s{s_t+1}, s{s_t}, {c*CHUNK + i*8192}")
            else:
                a(f"""s_min_u32 s{s_t+1}, s{s_t}, 3072
                s_add_u32 s{s_t+1}, s{s_t+1}, {c*CHUNK + i*8192}""")
            a(f"""s_add_u32 m0, s{s_t+1}, {ATT_B}
            s_add_u32 s{s_t+1}, s{s_t+1}, {WS_KV}
            buffer_load_dwordx4 v{vT}, {sr(S_WS,4)}, s{s_t+1} offen sc1 lds""")
    a("s_waitcnt vmcnt(6)")
    arrive(C_FULL)
    wait_ge(C_FULL, 8)
    stamp(6)
    k1off, k2off, voff = AL.k1off, AL.k2off, AL.voff
    a(f"""ds_read_b128 {vr(r.K1a,4)}, v{r.vKc} offset:{k1off(0,0)}
    ds_read_b128 {vr(r.K1b,4)}, v{r.vKc} offset:{k1off(0,1)}
    ds_read_b128 {vr(r.K2,4)}, v{r.vKc} offset:{k2off(0)}""")
    for i in range(3): a(f"ds_read_b128 {vr(V[i],4)}, v{r.vVc} offset:{voff(0,i)}")
    a("s_waitcnt lgkmcnt(3)")
    qk = lambda S, k, p: AL.qk(a, r, S, k, p)
    qk(SA, 0, 0); qk(SA, 0, 1); a("s_nop 9"); qk(SA, 0, 2)
    a("s_nop 15\ns_nop 4")
    for i in range(10): a(f"v_max3_f32 v{SB+i}, v{SA+3*i}, v{SA+3*i+1}, v{SA+3*i+2}")
    a(f"""v_max3_f32 v{SB}, v{SB}, v{SA+30}, v{SA+31}
    v_max3_f32 v{SB}, v{SB}, v{SB+1}, v{SB+2}
    v_max3_f32 v{SB+3}, v{SB+3}, v{SB+4}, v{SB+5}
    v_max3_f32 v{SB+6}, v{SB+6}, v{SB+7}, v{SB+8}
    v_max3_f32 v{SB}, v{SB}, v{SB+3}, v{SB+6}
    v_max_f32 v{SB}, v{SB}, v{SB+9}
    v_mov_b32 v{SB+1}, v{SB}
    s_nop 1
    v_permlane32_swap_b32 v{SB}, v{SB+1}
    s_nop 1
    v_max_f32 v{SB}, v{SB}, v{SB+1}
    v_cvt_pk_bf16_f32 v{Q2+1}, -v{SB}, 0
    s_nop 1""")
    qk(SA, 0, 0); qk(SA, 0, 1)
    a(f"""ds_read_b128 {vr(r.K1a,4)}, v{r.vKc} offset:{k1off(1,0)}
    ds_read_b128 {vr(r.K1b,4)}, v{r.vKc} offset:{k1off(1,1)}
    s_nop 7""")
    qk(SA, 0, 2)
    a("s_waitcnt vmcnt(3)")
    arrive(C_FULL + 4)
    a("s_waitcnt vmcnt(0)")
    arrive(C_FULL + 8)
    a(f"""s_mov_b32 s{s_c}, 0
    s_waitcnt lgkmcnt(0)
    s_nop 15""")
    def hook(p):
        if p == 0:
            a(f"""s_mov_b64 exec, 1
            ds_add_u32 v{vFl}, v{vOne} offset:{C_FREE-4}
            s_mov_b64 exec, -1""")
        if p == 1:
            a(f"ds_read_b32 v{vF}, v{vFl} offset:{C_FULL+4}")
        if p == 2:
            ok = a.newlabel("AOK")
            a(f"""v_readfirstlane_b32 s{s_t}, v{vF}
            s_cmp_ge_u32 s{s_t}, 8
            s_cbranch_scc1 {ok}""")
            wait_ge(C_FULL + 4, 8, vtmp=vF, vaddr=vFl)
            a.label(ok)
    a.label("A_LOOP")
    for p in range(4): AL.emit_pair(a, r, p, "b", hook)
    a(f"""s_add_u32 s{s_c}, s{s_c}, 1
    v_mov_b32 v{r.vKc}, v{r.vKn}
    v_mov_b32 v{r.vVc}, v{r.vVn}
    s_mov_b32 s{s_t}, {CHUNK}
    s_cmp_eq_u32 s{s_c}, 2
    s_cselect_b32 s{s_t}, {-2*CHUNK & 0xffffffff}, s{s_t}
    s_cmp_eq_u32 s{s_c}, 5
    s_cselect_b32 s{s_t}, {-2*CHUNK & 0xffffffff}, s{s_t}
    v_add_u32 v{r.vKn}, s{s_t}, v{r.vKn}
    v_add_u32 v{r.vVn}, s{s_t}, v{r.vVn}
    v_add_u32 v{vFl}, 4, v{vFl}
    s_cmp_lt_u32 s{s_c}, 8
    s_cbranch_scc1 A_LOOP
    s_waitcnt lgkmcnt(0)
    v_mfma_f32_32x32x16_bf16 {vr(O,16)}, {vr(V[3],4)}, {vr(SB+24,4)}, {vr(O,16)}""")
    stamp(7)
    a.label("A_EPI")
    a(f"""s_lshl_b32 s{s_t}, s{s_b}, 1
    s_and_b32 s{s_t+1}, s{s_wv}, 1
    s_add_u32 s{s_t}, s{s_t}, s{s_t+1}
    s_mul_i32 s{s_t}, s{s_t}, {32*1152}
    s_mul_i32 s{s_t+1}, s{s_g}, 144
    s_add_u32 s{s_t}, s{s_t}, s{s_t+1}
    s_lshr_b32 s{s_t+1}, s{s_wv}, 1
    s_mul_i32 s{s_t+1}, s{s_t+1}, 36
    s_add_u32 s{s_t}, s{s_t}, s{s_t+1}
    s_add_u32 s{s_t}, s{s_t}, {WS_O}
    v_and_b32 v{vT}, 31, v{vLane}
    v_mul_u32_u24 v{vT}, 1152, v{vT}
    v_lshrrev_b32 v{vT+1}, 5, v{vLane}
    v_lshl_add_u32 v{vT}, v{vT+1}, 4, v{vT}
    s_nop 3
    v_rcp_f32 v{vT+1}, v{O+10}
    s_nop 0""")
    for i in range(10): a(f"v_mul_f32 v{O+i}, v{O+i}, v{vT+1}")
    for i in range(5): a(f"v_cvt_pk_bf16_f32 v{SA+i}, v{O+2*i}, v{O+2*i+1}")
    a(f"""buffer_store_dwordx4 {vr(SA,4)}, v{vT}, {sr(S_WS,4)}, s{s_t} offen
    s_mov_b64 exec, 0xffffffff
    buffer_store_dword v{SA+4}, v{vT}, {sr(S_WS,4)}, s{s_t} offen offset:32
    s_mov_b64 exec, -1""")
    stamp(8)
    a("s_endpgm")

    a.label("M_LOADER")
    vL16, vA, vE8 = 9, 10, 11
    a(f"v_lshlrev_b32 v{vL16}, 4, v{vLane}")
    for rnd in range(3):
        a(f"s_waitcnt vmcnt({6-3*rnd})")
        arrive(C_WR + 4 * rnd)
    stamp(1)
    L = a.newlabel("PL"); D = a.newlabel("PD")
    a(f"""s_mov_b32 s{s_t+3}, 0x40000
    s_mov_b64 exec, 1""")
    a.label(L)
    a(f"""buffer_load_dword v{vT}, v{vZero}, {sr(S_DBG,4)}, 0 offen offset:128 sc1
    s_waitcnt vmcnt(0)
    v_readfirstlane_b32 s{s_t}, v{vT}
    s_cmp_eq_u32 s{s_t}, 1
    s_cbranch_scc1 {D}
    s_sub_u32 s{s_t+3}, s{s_t+3}, 1
    s_cmp_eq_u32 s{s_t+3}, 0
    s_cbranch_scc1 {D}
    s_sleep 2
    s_branch {L}""")
    a.label(D)
    a("s_mov_b64 exec, -1")
    stamp(2)
    wait_ge(C_QDONE, 8)
    arrive(C_KVGO)
    stamp(3)
    s_src, s_dst = s_t + 4, s_t + 5
    a(f"""s_mov_b32 s{s_src}, {WS_KV + 3*CHUNK}
    s_mov_b32 s{s_c}, 3
    v_mov_b32 v{vA}, 0
    v_mov_b32 v{vE8}, 8
    s_mov_b32 s{s_dst}, {ATT_B}""")
    a.label("LD_LOOP")
    wait_ge(C_FREE, 8, vaddr=vA, sleep=4)
    L = a.newlabel("FL")
    a(f"s_mov_b32 s{s_t+6}, 20")
    a.label(L)
    a(f"""s_mov_b32 m0, s{s_dst}
    s_add_u32 s{s_dst}, s{s_dst}, 1024
    buffer_load_dwordx4 v{vL16}, {sr(S_WS,4)}, s{s_src} offen sc1 lds
    s_add_u32 s{s_src}, s{s_src}, 1024
    s_sub_u32 s{s_t+6}, s{s_t+6}, 1
    s_cmp_lg_u32 s{s_t+6}, 0
    s_cbranch_scc1 {L}
    s_cmp_ge_u32 s{s_dst}, {ATT_B+3*CHUNK}
    s_cselect_b32 s{s_dst}, {ATT_B}, s{s_dst}
    s_waitcnt vmcnt(0)
    s_mov_b64 exec, 1
    ds_write_b32 v{vA}, v{vE8} offset:{C_FULL+12}
    s_mov_b64 exec, -1
    v_add_u32 v{vA}, 4, v{vA}
    s_add_u32 s{s_c}, s{s_c}, 1
    s_cmp_lt_u32 s{s_c}, 8
    s_cbranch_scc1 LD_LOOP""")
    stamp(5)
    a("s_waitcnt lgkmcnt(0)")
    a("s_endpgm")

    from gen_ssm import gen_ssm
    gen_ssm(a, dict(globals(), **locals()))
    a.label("MAIN_END")
    a("s_endpgm")
    return dict(name="main_kernel", vgpr=168, sgpr=100, grid=256, block=768, lds=LDS_MAIN)
```

```python
def gen_ssm(a, G):
    globals().update({k: v for k, v in G.items() if not k.startswith("__")})
    s_d, s_T, s_U, s_hf = 90, 91, 92, 93
    s_d0, s_sg, s_n = 50, 51, 79
    a.label("M_SSM")
    a(f"""s_sub_u32 s{s_sg}, s{s_wv}, 8
    s_and_b32 s{s_d0}, s2, 7
    s_mul_i32 s{s_d0}, s{s_d0}, 72
    s_lshr_b32 s{s_t}, s2, 3
    s_lshl_b32 s{s_t+1}, s{s_t}, 1
    s_add_u32 s{s_d0}, s{s_d0}, s{s_t+1}
    s_sub_i32 s{s_t+1}, s{s_t}, 16
    s_max_i32 s{s_t+1}, s{s_t+1}, 0
    s_min_i32 s{s_t+1}, s{s_t+1}, 8
    s_add_u32 s{s_d0}, s{s_d0}, s{s_t+1}
    s_lshr_b32 s{s_t+1}, s{s_g}, 1
    s_cmp_eq_u32 s{s_t+1}, 2
    s_cselect_b32 s{s_n}, 3, 2
    s_add_u32 s{s_d}, s{s_d0}, s{s_sg}
    s_mul_i32 s{s_U}, s{s_sg}, {U_SLOT}
    s_add_u32 s{s_U}, s{s_U}, {U_B}
    s_lshl_b32 s{s_T}, s{s_sg}, 14
    s_sub_u32 s{s_T}, {T_B[0]}, s{s_T}
    s_cmp_lt_u32 s{s_sg}, s{s_n}
    s_cbranch_scc1 S_GO
    s_cmp_lt_u32 s{s_g}, 2
    s_cbranch_scc0 MAIN_END""")
    wait_ge(C_PUB, 8)
    a(f"""s_mov_b64 exec, 1
    v_mov_b32 v{vT}, 1
    buffer_atomic_add v{vT}, v{vZero}, {sr(S_DBG,4)}, 0 offen sc0
    s_waitcnt vmcnt(0)
    v_readfirstlane_b32 s{s_t}, v{vT}
    s_cmp_lg_u32 s{s_t}, 63
    s_cbranch_scc1 S_PUBX
    buffer_store_dword v{vOne}, v{vZero}, {sr(S_DBG,4)}, 0 offen offset:128 sc1""")
    a.label("S_PUBX")
    a("s_mov_b64 exec, -1")
    stamp(1)
    a("s_endpgm")
    a.label("S_GO")
    a("s_setprio 3")
    srd(a, S_U, P_U, 2048 * 1152)
    PK = 8
    vLd, vDs, vDt = 14, 15, 14
    a(f"""s_lshl_b32 s{s_t}, s{s_d}, 8
    v_lshlrev_b32 v{vT}, 2, v{vLane}
    v_add_u32 v{vT}, s{s_t}, v{vT}
    s_lshl_b32 s{s_t}, s{s_d}, 1
    v_mov_b32 v{vT+1}, s{s_t}""")
    for i, p in enumerate((P_ARE, P_AIM, P_BRE, P_BIM, P_CRE, P_CIM)):
        a(f"global_load_dword v{PK+i}, v{vT}, {sr(p,2)}")
    a(f"""global_load_ushort v{vLd}, v{vT+1}, {sr(P_LDT,2)}
    global_load_ushort v{vDs}, v{vT+1}, {sr(P_DSK,2)}
    v_cmp_eq_u32 vcc, 0, v{vLane}
    s_waitcnt vmcnt(0)
    v_lshlrev_b32 v{vLd}, 16, v{vLd}
    v_mul_f32 v{vLd}, {f32(LOG2E)}, v{vLd}
    v_exp_f32 v{vLd}, v{vLd}
    v_lshlrev_b32 v{vDs}, 16, v{vDs}
    v_cvt_pk_bf16_f32 v{vDt}, v{vLd}, v{vLd}
    v_lshlrev_b32 v{vDt}, 16, v{vDt}
    v_cndmask_b32 v{vDs}, 0, v{vDs}, vcc""")
    stamp(1)
    TMP = [16, 18, 20, 22]
    Z1, Z8, Z256, Wc, Z2, Z4, P8 = 24, 26, 28, 30, 32, 34, 36
    Y = 38
    X = 54
    U6 = 54
    vA2, vBr = 60, 61
    vE = 62
    DK = 72
    TB = 88
    WA = 152
    TR = 160
    GA = 88
    PKD = (120, 128)
    tcount = [0]
    def cmul(d, x, y):
        t = TMP[tcount[0] % 4]; tcount[0] += 1
        a(f"v_pk_mul_f32 {vr(t,2)}, {vr(x,2)}, {vr(y,2)} op_sel:[1,1] op_sel_hi:[1,0] neg_lo:[1,0]")
        return (lambda: a(f"v_pk_fma_f32 {vr(d,2)}, {vr(x,2)}, {vr(y,2)}, {vr(t,2)} op_sel:[0,0,0] op_sel_hi:[0,1,1]"))
    def cmuls(lst):
        for i in range(0, len(lst), 4):
            fin = [cmul(*x) for x in lst[i:i+4]]
            for f in fin: f()
    y = lambda j: Y + 2 * j
    x = lambda j: Wc if j == 0 else X + 2 * (j - 1)

    def s1(half):
        def dst(tbl, grp):
            return TB + 32 * tbl + 8 * grp if half == 0 else PKD[tbl]
        def pack(tbl, grp, k, p, q):
            b = dst(tbl, grp); neg = "-" if tbl == 0 else ""
            o = lambda r, off, n: "0" if r is None else f"{n}v{r+off}"
            a(f"v_cvt_pk_bf16_f32 v{b+k}, {o(p,0,'')}, {o(q,0,'')}")
            a(f"v_cvt_pk_bf16_f32 v{b+4+k}, {o(p,1,neg)}, {o(q,1,neg)}")
        def flush(tbl, grp):
            if half == 0: return
            b = dst(tbl, grp)
            a(f"ds_write_b128 v{WA+grp}, {vr(b,4)} offset:{tbl*8192}")
            a(f"ds_write_b128 v{WA+4+grp}, {vr(b+4,4)} offset:{tbl*8192}")
        def packY(grp):
            for k in range(4): pack(1, grp, k, y(2*k), y(2*k+1))
            flush(1, grp)
        for i in range(6):
            a(f"v_lshlrev_b32 v{U6+i}, 16, v{PK+i}" if half == 0 else f"v_and_b32 v{U6+i}, 0xffff0000, v{PK+i}")
        Ar, Ai, Br, Bi, Cr, Ci = [U6 + i for i in range(6)]
        a(f"""v_mul_f32 v{vA2}, v{Ar}, v{vDt}
        v_mul_f32 v{vBr}, v{Ai}, v{vDt}
        v_mul_f32 v{vA2}, {f32(LOG2E)}, v{vA2}
        v_mul_f32 v{vBr}, 0.15915494, v{vBr}
        v_mul_f32 v{vE}, v{Ci}, v{Bi}
        v_mul_f32 v{vE+1}, v{Ci}, v{Br}
        v_fma_f32 v{Wc}, v{Cr}, v{Br}, -v{vE}
        v_fma_f32 v{Wc+1}, v{Cr}, v{Bi}, v{vE+1}
        v_mul_f32 v{Wc}, v{Wc}, v{vDt}
        v_mul_f32 v{Wc+1}, v{Wc+1}, v{vDt}""")
        anchors = [(Z1, 1.0), (Z8, 8.0), (Z256, 256.0)]
        for k, (z, e) in enumerate(anchors):
            a(f"""v_mul_f32 v{vE+2*k}, {f32(e)}, v{vA2}
            v_mul_f32 v{vE+2*k+1}, {f32(e)}, v{vBr}""")
        for k, (z, e) in enumerate(anchors):
            a(f"""v_exp_f32 v{vE+2*k}, v{vE+2*k}
            v_fract_f32 v{vE+2*k+1}, v{vE+2*k+1}""")
        for k, (z, e) in enumerate(anchors):
            a(f"""v_cos_f32 v{z}, v{vE+2*k+1}
            v_sin_f32 v{z+1}, v{vE+2*k+1}""")
        a("s_nop 0")
        for k, (z, e) in enumerate(anchors):
            a(f"""v_mul_f32 v{z}, v{z}, v{vE+2*k}
            v_mul_f32 v{z+1}, v{z+1}, v{vE+2*k}""")
        a(f"""v_mov_b32 v{y(0)}, 1.0
        v_mov_b32 v{y(0)+1}, 0
        v_mov_b32 v{y(1)}, v{Z8}
        v_mov_b32 v{y(1)+1}, v{Z8+1}""")
        cmuls([(y(2), Z8, Z8), (Z2, Z1, Z1), (x(1), Wc, Z1), (x(8), Wc, Z8)])
        cmuls([(y(3), y(2), Z8), (y(4), y(2), y(2)), (Z4, Z2, Z2), (x(2), Wc, Z2), (x(3), x(1), Z2)])
        cmuls([(y(5), y(4), Z8), (y(6), y(4), y(2)), (y(7), y(4), y(3)), (P8, y(4), y(4)),
               (x(4), Wc, Z4), (x(5), x(1), Z4), (x(6), x(2), Z4), (x(7), x(3), Z4)])
        packY(0)
        for k in range(4): pack(0, 0, k, x(2*k), x(2*k+1))
        flush(0, 0)
        Zm = lambda js: [(x(j), x(j), Z256) for j in js]
        Ym = lambda js: [(y(j), y(j), P8) for j in js]
        cmuls(Zm([0, 2, 4, 6, 8]) + Ym(range(8)))
        pack(0, 1, 0, x(0), x(2)); pack(0, 1, 1, x(4), None); pack(0, 1, 2, x(4), x(6)); pack(0, 1, 3, x(8), None)
        flush(0, 1)
        packY(1)
        cmuls(Zm([0, 4, 8]) + Ym(range(5)))
        pack(0, 2, 0, x(0), x(4)); pack(0, 2, 1, x(8), None)
        cmuls(Zm([0, 4, 8]) + Ym(range(5, 8)))
        pack(0, 2, 2, x(0), x(4)); pack(0, 2, 3, x(8), None)
        flush(0, 2)
        packY(2)
        for k in range(4):
            cmuls(Zm([0, 8]) + Ym([2*k, 2*k+1]))
            pack(0, 3, k, x(0), x(8))
        flush(0, 3)
        packY(3)

    FR = 16
    def s2(half):
        NS = 7
        def rd(s):
            f = FR + 8 * (s % NS)
            for tbl in range(2):
                for r_ in range(2):
                    a(f"ds_read_b64_tr_b16 {vr(f+4*tbl+2*r_,2)}, v{TR+r_} offset:{tbl*8192+s*1024}")
        def mm(k):
            f = FR + 8 * (k % NS)
            c = "0" if (half == 0 and k == 0) else vr(DK, 16)
            a(f"v_mfma_f32_32x32x16_bf16 {vr(DK,16)}, {vr(f,4)}, {vr(f+4,4)}, {c}")
        for s in range(8):
            rd(s)
            if s >= 2:
                a("s_waitcnt lgkmcnt(8)"); mm(s - 2)
        a("s_waitcnt lgkmcnt(4)"); mm(6)
        a("s_waitcnt lgkmcnt(0)"); mm(7)

    s1(0)
    a(f"""v_and_b32 v{vT}, 7, v{vLane}
    v_lshlrev_b32 v{vT+1}, 7, v{vLane}
    v_add_u32 v{vT+1}, s{s_T}, v{vT+1}""")
    for ci in range(8):
        a(f"""v_xor_b32 v{vT+2}, {ci}, v{vT}
        v_lshl_add_u32 v{WA+ci}, v{vT+2}, 4, v{vT+1}""")
    a(f"""v_lshrrev_b32 v{vT}, 5, v{vLane}
    v_lshlrev_b32 v{vT}, 2, v{vT}
    v_bfe_u32 v{vT+1}, v{vLane}, 3, 1
    v_add_u32 v{vT}, v{vT}, v{vT+1}
    v_bfe_u32 v{vT+1}, v{vLane}, 2, 1
    v_lshlrev_b32 v{vT+1}, 2, v{vT+1}
    v_bfe_u32 v{vT+2}, v{vLane}, 4, 1
    v_lshl_add_u32 v{vT+1}, v{vT+2}, 1, v{vT+1}
    v_bfe_u32 v{vT+2}, v{vLane}, 1, 1
    v_add_u32 v{vT+1}, v{vT+1}, v{vT+2}            ; ci
    v_and_b32 v{vT+2}, 1, v{vLane}
    v_lshlrev_b32 v{vT+2}, 3, v{vT+2}
    v_add_u32 v{vT+2}, s{s_T}, v{vT+2}""")
    for r_ in range(2):
        a(f"""v_xor_b32 v{vT+3}, v{vT}, v{vT+1}
        v_lshl_add_u32 v{TR+r_}, v{vT+3}, 4, v{vT+2}
        v_lshl_add_u32 v{TR+r_}, v{vT}, 7, v{TR+r_}""")
        if r_ == 0: a(f"v_add_u32 v{vT}, 2, v{vT}")
    stamp(2)
    wait_ge(C_QDONE, 8, sleep=4)
    stamp(3)
    for tbl in range(2):
        for grp in range(4):
            b = TB + 32 * tbl + 8 * grp
            a(f"ds_write_b128 v{WA+grp}, {vr(b,4)} offset:{tbl*8192}")
            a(f"ds_write_b128 v{WA+4+grp}, {vr(b+4,4)} offset:{tbl*8192}")
    s2(0)
    s1(1)
    vG = 162
    a(f"""s_cmp_ge_u32 s{s_sg}, 2
    s_cbranch_scc1 S_NOG1""")
    wait_ge(C_FULL + 8, 8, sleep=4)
    a(f"""    v_mul_u32_u24 v{vG}, {8*1152}, v{vLane}
    s_mul_i32 s{s_t}, s{s_sg}, {1024*1152}
    s_lshl_b32 s{s_t+1}, s{s_d0}, 1
    s_add_u32 s{s_t}, s{s_t}, s{s_t+1}""")
    for rnd in range(2):
        for i in range(8):
            a(f"buffer_load_dwordx2 {vr(GA+16*rnd+2*i,2)}, v{vG}, {sr(S_U,4)}, s{s_t} offen")
            if (rnd, i) != (1, 7):
                a(f"s_add_u32 s{s_t}, s{s_t}, {1152 if i < 7 else 512*1152 - 7*1152}")
    a.label("S_NOG1")
    s2(1)
    stamp(4)
    vj, vh, A0, Am, AH0, AH1, B0, Bm, C0, Cm = range(16, 26)
    ZR = 28
    a(f"""v_mov_b32 v{ZR}, 0
    v_mov_b32 v{ZR+1}, 0
    v_mov_b32 v{ZR+2}, 0
    v_mov_b32 v{ZR+3}, 0
    v_lshlrev_b32 v{vT+2}, 4, v{vLane}
    v_add_u32 v{vT}, s{s_T}, v{vT+2}""")
    for cp in range(2):
        base = KC_OFF + cp * KC_COPY + 31 * 144
        a(f"""ds_write_b128 v{vT}, {vr(ZR,4)} offset:{base}
        ds_write_b128 v{vT}, {vr(ZR,4)} offset:{base+1024}
        ds_write_b128 v{vT}, {vr(ZR,4)} offset:{base+2304-1024}""")
    a(f"""s_mul_i32 s{s_t+2}, s{s_d}, {UT_STRIDE}
    s_add_u32 s{s_t+2}, s{s_t+2}, {WS_UT}
    s_mov_b64 exec, 0xff
    buffer_store_dwordx4 {vr(ZR,4)}, v{vT+2}, {sr(S_WS,4)}, s{s_t+2} offen
    s_mov_b64 exec, -1""")
    def addr(dst, q0):
        a(f"""v_lshlrev_b32 v{vT}, 3, v{vj}
        v_sub_u32 v{vT}, {q0}, v{vT}
        v_ashrrev_i32 v{vT+1}, 6, v{vT}
        v_mul_i32_i24 v{vT+1}, 144, v{vT+1}
        v_and_b32 v{vT}, 63, v{vT}
        v_lshl_add_u32 v{dst}, v{vT}, 1, v{vT+1}
        v_add_u32 v{dst}, s{s_t}, v{dst}""")
    a(f"""v_and_b32 v{vj}, 31, v{vLane}
    v_lshrrev_b32 v{vh}, 5, v{vLane}
    s_add_u32 s{s_t}, s{s_T}, {KC_OFF}""")
    addr(A0, 248); addr(Am, 244)
    a(f"""v_cmp_eq_u32 vcc, 1, v{vh}
    v_lshlrev_b32 v{vT}, 3, v{vh}
    v_sub_u32 v{AH1}, v{A0}, v{vT}
    v_add_u32 v{AH1}, 8, v{AH1}
    v_cndmask_b32 v{AH0}, v{A0}, v{Am}, vcc
    v_mul_u32_u24 v{vT}, 576, v{vh}
    v_sub_u32 v{B0}, v{A0}, v{vT}
    v_sub_u32 v{Bm}, v{Am}, v{vT}
    v_sub_u32 v{C0}, v{B0}, v{vT}
    v_sub_u32 v{Cm}, v{Bm}, v{vT}
    v_and_b32 v{vT}, 1, v{vj}
    v_cmp_eq_u32 vcc, 1, v{vT}
    v_add_f32 v{DK}, v{DK}, v{vDs}""")
    d = lambda r_: f"v{DK+r_}"
    E0 = 32
    a(f"""v_cvt_pk_bf16_f32 v{E0}, {d(3)}, {d(2)}
    v_cvt_pk_bf16_f32 v{E0+1}, {d(1)}, {d(0)}
    v_cvt_pk_bf16_f32 v{E0+2}, {d(6)}, {d(5)}
    v_cvt_pk_bf16_f32 v{E0+3}, {d(4)}, {d(4)}
    v_cvt_pk_bf16_f32 v{E0+4}, {d(10)}, {d(10)}
    v_cvt_pk_bf16_f32 v{E0+5}, {d(9)}, {d(9)}
    v_cvt_pk_bf16_f32 v{E0+6}, {d(9)}, {d(8)}
    v_cvt_pk_bf16_f32 v{E0+7}, {d(8)}, {d(8)}
    v_cndmask_b32 v{vT}, {d(12)}, {d(13)}, vcc
    v_cndmask_b32 v{vT+1}, {d(14)}, {d(15)}, vcc
    v_cvt_pk_bf16_f32 v{E0+8}, {d(13)}, {d(13)}
    v_cvt_pk_bf16_f32 v{E0+9}, {d(13)}, v{vT}
    v_cvt_pk_bf16_f32 v{E0+10}, {d(12)}, {d(12)}
    v_cvt_pk_bf16_f32 v{E0+11}, {d(12)}, {d(12)}
    v_cvt_pk_bf16_f32 v{E0+12}, {d(15)}, {d(15)}
    v_cvt_pk_bf16_f32 v{E0+13}, {d(15)}, v{vT+1}
    v_cvt_pk_bf16_f32 v{E0+14}, {d(14)}, {d(14)}
    v_cvt_pk_bf16_f32 v{E0+15}, {d(14)}, {d(14)}""")
    blk = lambda m: 576 * (7 - m)
    a(f"""ds_write_b64 v{AH0}, {vr(E0,2)} offset:{blk(0)}
    ds_write_b64 v{AH1}, {vr(E0,2)} offset:{blk(0)+KC_COPY}
    ds_write_b64 v{AH0}, {vr(E0+2,2)} offset:{blk(1)}
    ds_write_b64 v{AH1}, {vr(E0+2,2)} offset:{blk(1)+KC_COPY}
    ds_write_b64 v{Bm}, {vr(E0+4,2)} offset:{blk(2)}
    ds_write_b64 v{B0}, {vr(E0+6,2)} offset:{blk(2)}
    ds_write_b128 v{B0}, {vr(E0+4,4)} offset:{blk(2)+KC_COPY}
    ds_write_b64 v{Cm}, {vr(E0+8,2)} offset:{blk(4)}
    ds_write_b64 v{C0}, {vr(E0+10,2)} offset:{blk(4)}
    ds_write_b128 v{C0}, {vr(E0+8,4)} offset:{blk(4)+KC_COPY}
    ds_write_b64 v{Cm}, {vr(E0+12,2)} offset:{blk(5)}
    ds_write_b64 v{C0}, {vr(E0+14,2)} offset:{blk(5)}
    ds_write_b128 v{C0}, {vr(E0+12,4)} offset:{blk(5)+KC_COPY}""")
    stamp(5)
    GO = 48
    a(f"""s_cmp_ge_u32 s{s_sg}, 2
    s_cbranch_scc1 S_NOG2
    s_mul_i32 s{s_t}, s{s_d0}, {UT_STRIDE}
    s_lshl_b32 s{s_t+1}, s{s_sg}, 11
    s_add_u32 s{s_t}, s{s_t}, s{s_t+1}
    s_add_u32 s{s_t}, s{s_t}, {WS_UT + 128}
    s_waitcnt vmcnt(0)""")
    for e in range(3):
        if e == 2:
            a(f"""s_cmp_lt_u32 s{s_n}, 3
            s_cbranch_scc1 S_G2X""")
        for rnd in range(2):
            o = GO + 8 * e + 4 * rnd
            for k in range(4):
                a(f"v_perm_b32 v{o+k}, v{GA+16*rnd+2*(2*k+1)+(e>>1)}, v{GA+16*rnd+2*(2*k)+(e>>1)}, s{s_selA if (e & 1) == 0 else s_selB}")
            a(f"buffer_store_dwordx4 {vr(o,4)}, v{vT+2}, {sr(S_WS,4)}, s{s_t} offen offset:{1024*rnd}")
        if e < 2: a(f"s_add_u32 s{s_t}, s{s_t}, {UT_STRIDE}")
    a.label("S_G2X")
    a("s_waitcnt vmcnt(0)")
    arrive(C_UT)
    a.label("S_NOG2")
    a("s_waitcnt vmcnt(0)")
    wait_ge(C_UT, 2, sleep=4)
    stamp(6)
    a(f"""v_lshlrev_b32 v{vT}, 4, v{vLane}
    s_add_u32 s{s_t}, s{s_t+2}, 10
    s_mov_b32 s{s_t+1}, s{s_U}
    s_mov_b32 s{s_t+2}, 0""")
    a.label("S_UDMA")
    for i in range(5):
        a(f"s_add_u32 m0, s{s_t+1}, {1024*i}")
        a(f"s_add_u32 s{s_t+3}, s{s_t}, {1024*i}")
        if i == 4: a("s_mov_b64 exec, 0xff")
        a(f"buffer_load_dwordx4 v{vT}, {sr(S_WS,4)}, s{s_t+3} offen sc1 lds")
    a(f"""s_mov_b64 exec, -1
    s_add_u32 s{s_t}, s{s_t}, 2
    s_add_u32 s{s_t+1}, s{s_t+1}, {U_COPY}
    s_add_u32 s{s_t+2}, s{s_t+2}, 1
    s_cmp_lt_u32 s{s_t+2}, 4
    s_cbranch_scc1 S_UDMA""")
    vA, vB, vO = 8, 9, 10
    a(f"""v_and_b32 v{vT}, 3, v{vLane}
    v_mul_u32_u24 v{vA}, {U_COPY}, v{vT}
    v_bfe_u32 v{vT}, v{vLane}, 2, 3
    v_add_u32 v{vT}, v{vT}, v{vh}
    v_lshl_add_u32 v{vA}, v{vT}, 4, v{vA}
    v_add_u32 v{vA}, s{s_U}, v{vA}
    v_and_b32 v{vT}, 1, v{vLane}
    v_mul_u32_u24 v{vB}, {KC_COPY}, v{vT}
    v_lshlrev_b32 v{vO}, 3, v{vT}
    v_bfe_u32 v{vT}, v{vLane}, 1, 4
    v_lshl_add_u32 v{vO}, v{vT}, 7, v{vO}
    v_lshl_add_u32 v{vO}, v{vh}, 4, v{vO}
    v_sub_u32 v{vT}, 15, v{vT}
    v_mul_u32_u24 v{vT}, 144, v{vT}
    v_add_u32 v{vB}, v{vB}, v{vT}
    v_lshl_add_u32 v{vB}, v{vh}, 4, v{vB}
    s_add_u32 s{s_t}, s{s_T}, {KC_OFF}
    v_add_u32 v{vB}, s{s_t}, v{vB}""")
    Y0, Y1, F = 16, 32, 48
    for i in range(32): a(f"v_mov_b32 v{Y0+i}, 0")
    def loads(s):
        f = F + 16 * (s & 3)
        bo = (s >> 2) * 144 + 32 * (s & 3)
        a(f"""ds_read_b128 {vr(f,4)}, v{vA} offset:{32*s}
        ds_read_b128 {vr(f+4,4)}, v{vB} offset:{bo+2304}
        ds_read_b128 {vr(f+8,4)}, v{vB} offset:{bo}
        ds_read_b128 {vr(f+12,4)}, v{vA} offset:{32*s+2048}""")
    a(f"""s_mov_b32 s{s_hf}, 0
    s_waitcnt vmcnt(0)""")
    stamp(7)
    a(f"s_setprio {CONVPRIO}")
    loads(0); loads(1)
    a.label("S_CONV")
    for s in range(4):
        loads(s + 2)
        f = F + 16 * s
        a(f"""s_waitcnt lgkmcnt(8)
        v_mfma_f32_32x32x16_bf16 {vr(Y0,16)}, {vr(f,4)}, {vr(f+4,4)}, {vr(Y0,16)}
        v_mfma_f32_32x32x16_bf16 {vr(Y1,16)}, {vr(f,4)}, {vr(f+8,4)}, {vr(Y1,16)}
        v_mfma_f32_32x32x16_bf16 {vr(Y1,16)}, {vr(f+12,4)}, {vr(f+4,4)}, {vr(Y1,16)}""")
    a(f"""v_add_u32 v{vA}, 128, v{vA}
    v_add_u32 v{vB}, 144, v{vB}
    s_add_u32 s{s_hf}, s{s_hf}, 1
    s_cmp_lt_u32 s{s_hf}, 16
    s_cbranch_scc1 S_CONV
    s_lshl_b32 s{s_t}, s{s_d}, 12
    s_add_u32 s{s_t}, s{s_t}, {WS_YT}
    s_nop 7
    s_waitcnt lgkmcnt(0)""")
    for tau in range(2):
        for q in range(4):
            r_ = Y0 + 16 * tau + 4 * q
            o = F + 2 * (4 * tau + q)
            a(f"""v_cvt_pk_bf16_f32 v{o}, v{r_}, v{r_+1}
            v_cvt_pk_bf16_f32 v{o+1}, v{r_+2}, v{r_+3}
            buffer_store_dwordx2 {vr(o,2)}, v{vO}, {sr(S_WS,4)}, s{s_t} offen offset:{32*q+2048*tau}""")
    stamp(8)
    a("s_endpgm")
```

```python
import sys, math, struct
sys.path.insert(0, "gen")
from asmlib import Asm, check_hazards

PROF = "--prof" in sys.argv
CONVPRIO = int([x.split("=")[1] for x in sys.argv if x.startswith("--convprio=")][0]) if any(x.startswith("--convprio=") for x in sys.argv) else 0
NAME = "concat_heads__ssm_conv_s4__grouped_kv_mqa__prompt"

UT_STRIDE = 4224
WS_UT = 0x000000
WS_KV = 0x260000
WS_O = 0x290000
WS_YT = 0x4D0000
WS_PROF = 0x710000
WS_SIZE = 0x800000
CHUNK = 20480
KV_K2 = 8192
KV_V = 10240
VT_TILE = 1216

ATT_B = 256
W_B = 256
Z_B = W_B + 6 * 9216
X_B = W_B + 82944
U_B = 63232
U_SLOT = 17152
U_COPY = 4288
T_B = [147456, 131072, 114688]
KC_OFF = 32
KC_COPY = 6784
LDS_MAIN = 163840

def f32(x):
    return "0x%08x" % struct.unpack("<I", struct.pack("<f", x))[0]
LOG2E = 1.4426950408889634
QSCALE = (18 ** -0.5) * LOG2E

def vr(b, n=1):
    return f"v{b}" if n == 1 else f"v[{b}:{b+n-1}]"
def sr(b, n=1):
    return f"s{b}" if n == 1 else f"s[{b}:{b+n-1}]"

def srd(a, dst, ptr, nbytes):
    a(f"""s_mov_b32 s{dst}, s{ptr}
    s_and_b32 s{dst+1}, s{ptr+1}, 0xffff
    s_mov_b32 s{dst+2}, {nbytes}
    s_mov_b32 s{dst+3}, 0x00020000""")

def transpose8x8(a, L, O, selA, selB):
    for dw in range(4):
        for e in range(2):
            c = 2 * dw + e
            for k in range(4):
                a(f"v_perm_b32 v{O+4*c+k}, v{L+4*(2*k+1)+dw}, v{L+4*(2*k)+dw}, {selA if e == 0 else selB}")

def proj_issue_x(a, S_X, s_xoff, s_wv, vLane, vT, s_tmp, flags=""):
    a(f"""v_lshrrev_b32 v{vT}, 3, v{vLane}             ; row8
    s_and_b32 s{s_tmp}, s{s_wv}, 1
    s_lshl_b32 s{s_tmp}, s{s_tmp}, 2
    v_lshrrev_b32 v{vT+1}, 4, v{vLane}
    v_add_u32 v{vT+1}, s{s_tmp}, v{vT+1}
    v_and_b32 v{vT+2}, 7, v{vLane}
    v_xor_b32 v{vT+1}, v{vT+1}, v{vT+2}
    v_mul_u32_u24 v{vT}, 1152, v{vT}
    v_lshl_add_u32 v{vT}, v{vT+1}, 4, v{vT}
    s_mul_i32 s{s_tmp}, s{s_wv}, {8*1152}
    s_add_u32 s{s_tmp}, s{s_tmp}, s{s_xoff}
    s_lshl_b32 s{s_tmp+1}, s{s_wv}, 10
    s_add_u32 s{s_tmp+1}, s{s_tmp+1}, {X_B}""")
    for p in range(9):
        a(f"s_mov_b32 m0, s{s_tmp+1}")
        a(f"s_add_u32 s{s_tmp+1}, s{s_tmp+1}, 8192" if p < 8 else "s_nop 0")
        a(f"buffer_load_dwordx4 v{vT}, {sr(S_X,4)}, s{s_tmp} offen {flags} lds")
        if p < 8: a(f"s_add_u32 s{s_tmp}, s{s_tmp}, 128")

def proj_issue_w(a, S_W, s_g, s_k9, vLane, vT, s_tmp):
    vRow, vCh = vT + 1, vT + 2
    a(f"""s_lshl_b32 s{s_tmp}, s{s_k9}, 6
    v_add_u32 v{vT}, s{s_tmp}, v{vLane}
    v_mul_u32_u24 v{vRow}, 7282, v{vT}
    v_lshrrev_b32 v{vRow}, 16, v{vRow}
    v_mul_u32_u24 v{vCh}, 9, v{vRow}
    v_sub_u32 v{vCh}, v{vT}, v{vCh}
    v_and_b32 v{vT}, 3, v{vRow}
    v_bfe_u32 v{vT+3}, v{vRow}, 2, 2
    v_lshl_add_u32 v{vT}, v{vT}, 2, v{vT+3}
    v_and_b32 v{vRow}, 0x30, v{vRow}
    v_add_u32 v{vRow}, v{vRow}, v{vT}
    v_mul_u32_u24 v{vT}, 1152, v{vRow}
    v_lshl_add_u32 v{vT}, v{vCh}, 4, v{vT}
    s_mul_i32 s{s_tmp}, s{s_g}, 144
    s_lshl_b32 s{s_tmp+1}, s{s_k9}, 10
    s_add_u32 s{s_tmp+1}, s{s_tmp+1}, {W_B}""")
    for p in range(9):
        a(f"s_mov_b32 m0, s{s_tmp+1}")
        a(f"s_add_u32 s{s_tmp+1}, s{s_tmp+1}, {9*1024}" if p < 8 else "s_nop 0")
        a(f"buffer_load_dwordx4 v{vT}, {sr(S_W,4)}, s{s_tmp} offen lds")
        if p < 8: a(f"s_add_u32 s{s_tmp}, s{s_tmp}, {64*1152}")

def proj_addrs(a, s_wv, vLane, vXA, vTr, vT, s_tmp, s_colbyte, s_tbl):
    a(f"""v_and_b32 v{vT}, 31, v{vLane}
    v_bfe_u32 v{vT+1}, v{vLane}, 1, 3              ; key
    v_lshrrev_b32 v{vT+2}, 5, v{vLane}             ; h
    v_xor_b32 v{vT+1}, v{vT+1}, v{vT+2}
    s_and_b32 s{s_tmp}, s{s_wv}, 1
    s_lshl_b32 s{s_tmp}, s{s_tmp}, 12
    s_add_u32 s{s_tmp}, s{s_tmp}, {X_B}
    v_lshlrev_b32 v{vT}, 7, v{vT}
    v_add_u32 v{vT}, s{s_tmp}, v{vT}""")
    for s in range(4):
        a(f"""v_xor_b32 v{vT+3}, {2*s}, v{vT+1}
        v_lshl_add_u32 v{vXA+s}, v{vT+3}, 4, v{vT}""")
    a(f"""v_lshlrev_b32 v{vT}, 1, v{vT+2}
    v_bfe_u32 v{vT+1}, v{vLane}, 2, 2
    v_lshl_add_u32 v{vT}, v{vT+1}, 2, v{vT}
    v_mul_u32_u24 v{vT}, 144, v{vT}
    v_bfe_u32 v{vT+1}, v{vLane}, 4, 1
    v_and_b32 v{vT+2}, 3, v{vLane}
    v_lshl_add_u32 v{vT+1}, v{vT+1}, 2, v{vT+2}    ; RG
    v_lshlrev_b32 v{vT+1}, 2, v{vT+1}
    v_lshrrev_b32 v{vT+1}, v{vT+1}, s{s_tbl}
    v_and_b32 v{vT+1}, 7, v{vT+1}
    v_lshl_add_u32 v{vT}, v{vT+1}, 3, v{vT}
    s_add_u32 s{s_tmp}, s{s_colbyte}, {W_B}
    v_add_u32 v{vTr}, s{s_tmp}, v{vT}""")

def proj_round(a, rnd, vXA, vTr, FR, ACC):
    D = 5
    def reads(i):
        f = FR + 8 * (i % 6)
        p, s = i >> 2, i & 3
        a(f"""ds_read_b64_tr_b16 {vr(f,2)}, v{vTr} offset:{(16*i)*144}
        ds_read_b64_tr_b16 {vr(f+2,2)}, v{vTr} offset:{(16*i+1)*144}
        ds_read_b128 {vr(f+4,4)}, v{vXA+s} offset:{p*8192}""")
    for i in range(D): reads(i)
    for i in range(12):
        a(f"s_waitcnt lgkmcnt({min(3*(D-1), 3*(11-i))})")
        f = FR + 8 * (i % 6)
        c = "0" if (rnd == 0 and i == 0) else vr(ACC, 16)
        a(f"v_mfma_f32_32x32x16_bf16 {vr(ACC,16)}, {vr(f,4)}, {vr(f+4,4)}, {c}")
        if i + D < 12: reads(i + D)
    if rnd < 2:
        a(f"v_add_u32 v{vTr}, {192*144}, v{vTr}")
        for s in range(4): a(f"v_add_u32 v{vXA+s}, {3*8192}, v{vXA+s}")

def decode_wg(a, s_b, s_g, s_tmp):
    a(f"""s_and_b32 s{s_b}, s2, 7
    s_lshr_b32 s{s_tmp}, s2, 3
    s_and_b32 s{s_tmp}, s{s_tmp}, 3
    s_lshl_b32 s{s_tmp}, s{s_tmp}, 3
    s_add_u32 s{s_b}, s{s_b}, s{s_tmp}
    s_lshr_b32 s{s_g}, s2, 5""")

def nib(l):
    return sum(x << (4 * i) for i, x in enumerate(l))

def gen_out(a):
    S_W, S_OUT, S_WS = 24, 28, 32
    s_wv, s_b, s_g, s_t, s_xo = 36, 37, 38, 40, 39
    s_selA, s_selB = 44, 45
    s_col, s_tbl = 49, 50
    vLane, vT, vTr, vXA = 1, 4, 8, 10
    FR, ACC = 16, 64
    TL, TO = 16, 48
    def ostamp(idx):
        if not PROF: return
        a(f"""s_memrealtime s[46:47]
        s_mul_i32 s48, s2, 12
        s_add_u32 s48, s48, s{s_wv}
        s_lshl_b32 s48, s48, 6
        s_add_u32 s48, s48, {WS_PROF + 0x40000 + 4*idx}
        s_waitcnt lgkmcnt(0)
        v_mov_b32 v82, s46
        v_mov_b32 v83, 0
        s_mov_b64 exec, 1
        buffer_store_dword v82, v83, {sr(S_WS,4)}, s48 offen
        s_mov_b64 exec, -1""")
    a.raw(".p2align 8")
    a.label("out_kernel")
    a(f"""s_cmp_ge_u32 s2, 256
    s_cbranch_scc1 OUT_END
    s_load_dwordx4 s[16:19], s[0:1], 104
    s_load_dwordx2 s[20:21], s[0:1], 128
    v_lshrrev_b32 v{vT}, 6, v0
    v_and_b32 v{vLane}, 63, v0
    v_readfirstlane_b32 s{s_wv}, v{vT}""")
    decode_wg(a, s_b, s_g, s_t)
    a(f"""s_mov_b32 s{s_selA}, 0x05040100
    s_mov_b32 s{s_selB}, 0x07060302
    s_waitcnt lgkmcnt(0)""")
    srd(a, S_W, 16, 576 * 1152)
    srd(a, S_OUT, 18, 2048 * 2304)
    srd(a, S_WS, 20, WS_SIZE)
    ostamp(0)
    a(f"""s_cmp_ge_u32 s{s_wv}, 9
    s_cbranch_scc1 OUT_TR
    s_cmp_ge_u32 s{s_wv}, 8
    s_cbranch_scc1 OUT_NOX
    s_mul_i32 s{s_xo}, s{s_b}, {64*1152}
    s_add_u32 s{s_xo}, s{s_xo}, {WS_O}""")
    proj_issue_x(a, S_WS, s_xo, s_wv, vLane, vT, s_t)
    a.label("OUT_NOX")
    proj_issue_w(a, S_W, s_g, s_wv, vLane, vT, s_t)
    a(f"""s_lshr_b32 s{s_t}, s{s_wv}, 1
    s_mul_i32 s{s_col}, s{s_t}, 36
    s_and_b32 s{s_t}, s{s_t}, 1
    s_lshl_b32 s{s_t}, s{s_t}, 2
    s_add_u32 s{s_col}, s{s_col}, s{s_t}
    s_mov_b32 s{s_tbl}, {nib([0,1,2,3,4,4,4,4])}""")
    proj_addrs(a, s_wv, vLane, vXA, vTr, vT, s_t, s_col, s_tbl)
    for rnd in range(3):
        a(f"s_waitcnt vmcnt({6-3*rnd})")
        a("s_barrier")
        ostamp(1 + rnd)
        a(f"""s_cmp_ge_u32 s{s_wv}, 8
        s_cbranch_scc1 OUT_S{rnd}""")
        proj_round(a, rnd, vXA, vTr, FR, ACC)
        a.label(f"OUT_S{rnd}")
    a(f"""s_cmp_ge_u32 s{s_wv}, 8
    s_cbranch_scc1 OUT_END""")
    a(f"""s_lshl_b32 s{s_t}, s{s_b}, 1
    s_and_b32 s{s_t+1}, s{s_wv}, 1
    s_add_u32 s{s_t}, s{s_t}, s{s_t+1}
    s_mul_i32 s{s_t}, s{s_t}, {32*2304}
    s_mul_i32 s{s_t+1}, s{s_g}, 144
    s_add_u32 s{s_t}, s{s_t}, s{s_t+1}
    s_add_u32 s{s_t}, s{s_t}, s{s_col}
    s_add_u32 s{s_t}, s{s_t}, 1152
    v_and_b32 v{vT}, 31, v{vLane}
    v_mul_u32_u24 v{vT}, 2304, v{vT}
    v_lshrrev_b32 v{vT+1}, 5, v{vLane}
    v_lshl_add_u32 v{vT}, v{vT+1}, 3, v{vT}
    s_nop 3""")
    for i in range(6): a(f"v_cvt_pk_bf16_f32 v{FR+i}, v{ACC+2*i}, v{ACC+2*i+1}")
    a(f"""buffer_store_dwordx2 {vr(FR,2)}, v{vT}, {sr(S_OUT,4)}, s{s_t} offen
    buffer_store_dwordx2 {vr(FR+2,2)}, v{vT}, {sr(S_OUT,4)}, s{s_t} offen offset:16
    s_bitcmp1_b32 s{s_wv}, 1
    s_cbranch_scc1 OUT_NO5
    s_mov_b64 exec, 0xffffffff
    buffer_store_dwordx2 {vr(FR+4,2)}, v{vT}, {sr(S_OUT,4)}, s{s_t} offen offset:32
    s_mov_b64 exec, -1""")
    a.label("OUT_NO5")
    if PROF: a("s_waitcnt vmcnt(0)")
    ostamp(4)
    a("s_endpgm")
    a.label("OUT_TR")
    a(f"""v_mul_u32_u24 v{vT+2}, 7282, v{vLane}
    v_lshrrev_b32 v{vT+2}, 16, v{vT+2}           ; lane/9
    v_mul_u32_u24 v{vT+3}, 9, v{vT+2}
    v_sub_u32 v{vT+3}, v{vLane}, v{vT+3}         ; cg
    v_lshlrev_b32 v{vT}, 15, v{vT+3}             ; cg*8*4096
    v_lshl_add_u32 v{vT}, v{vT+2}, 4, v{vT}      ; + rg*16
    v_mul_u32_u24 v{vT+1}, {8*2304}, v{vT+2}
    v_lshl_add_u32 v{vT+1}, v{vT+3}, 4, v{vT+1}
    s_sub_u32 s{s_t+3}, s{s_wv}, 9
    s_mul_i32 s{s_t+1}, s{s_g}, {72*4096}
    s_lshl_b32 s{s_t+2}, s{s_b}, 7
    s_add_u32 s{s_t+1}, s{s_t+1}, s{s_t+2}
    s_lshl_b32 s{s_t+2}, s{s_t+3}, 6
    s_add_u32 s{s_t+1}, s{s_t+1}, s{s_t+2}
    s_add_u32 s{s_t+1}, s{s_t+1}, {WS_YT}
    s_lshl_b32 s{s_t+2}, s{s_b}, 1
    s_add_u32 s{s_t+2}, s{s_t+2}, s{s_t+3}
    s_mul_i32 s{s_t+2}, s{s_t+2}, {32*2304}
    s_mul_i32 s{s_t}, s{s_g}, 144
    s_add_u32 s{s_t+2}, s{s_t+2}, s{s_t}
    s_mov_b32 exec_lo, -1
    s_mov_b32 exec_hi, 0xf""")
    for i in range(8):
        a(f"buffer_load_dwordx4 {vr(TL+4*i,4)}, v{vT}, {sr(S_WS,4)}, s{s_t+1} offen")
        if i < 7: a(f"s_add_u32 s{s_t+1}, s{s_t+1}, 4096")
    a("s_waitcnt vmcnt(0)")
    transpose8x8(a, TL, TO, f"s{s_selA}", f"s{s_selB}")
    for t in range(8):
        a(f"buffer_store_dwordx4 {vr(TO+4*t,4)}, v{vT+1}, {sr(S_OUT,4)}, s{s_t+2} offen")
        if t < 7: a(f"s_add_u32 s{s_t+2}, s{s_t+2}, 2304")
    a.label("OUT_END")
    a("s_endpgm")
    return dict(name="out_kernel", vgpr=88, sgpr=56, grid=256, block=704, lds=X_B + 73728)

from gen_main import gen_main

def build(path):
    a = Asm()
    ks = []
    ks.append(gen_main(a, globals()))
    ks.append(gen_out(a))
    probs = check_hazards(a.lines)
    hdr = open("cdna_kernels/" + NAME + ".s.ref").read().split("; Override launch geometry")[0]
    out = hdr
    for k in ks:
        out += f"; @launch kernel={k['name']} grid=({k['grid']},1,1) block=({k['block']},1,1) lds={k['lds']}\n"
    out += '.amdgcn_target "amdgcn-amd-amdhsa--gfx950"\n.text\n'
    for k in ks:
        out += f".globl {k['name']}\n.type {k['name']},@function\n"
    out += a.text()
    out += '.section .rodata,"a"\n'
    for k in ks:
        v = (k['vgpr'] + 7) // 8 * 8
        out += f""".p2align 6
.amdhsa_kernel {k['name']}
  .amdhsa_next_free_vgpr {v}
  .amdhsa_next_free_sgpr {k['sgpr']}
  .amdhsa_accum_offset {v}
  .amdhsa_group_segment_fixed_size 0
  .amdhsa_kernarg_size 136
  .amdhsa_user_sgpr_count 2
  .amdhsa_user_sgpr_kernarg_segment_ptr 1
  .amdhsa_system_sgpr_workgroup_id_x 1
.end_amdhsa_kernel
"""
    open(path, "w").write(out)
    print("wrote", path, "hazards:", len(probs), "lines:", len(a.lines))

if __name__ == "__main__":
    outp = [x for x in sys.argv[1:] if not x.startswith("--")]
    build(outp[0] if outp else "cdna_kernels/" + NAME + ".s")
```

```python
import attn_loop as AL
def gen_main(a, G):
    globals().update({k: v for k, v in G.items() if not k.startswith("__")})
    C_XRDY, C_KVDONE, C_PUB, C_QDONE, C_KVGO, C_UT, C_R0DONE = 0, 4, 8, 12, 16, 20, 24
    C_FULL = 32
    C_FREE = 72
    C_WR = 112
    C_ODONE, C_OGO, C_SSMDONE, C_WORDY = 128, 132, 136, 140
    C_OR = 144
    S_WO, S_OUT = 52, 56
    P_U, P_ARE, P_AIM, P_BRE, P_BIM, P_CRE, P_CIM, P_LDT, P_DSK, P_X, P_WQ, P_WK, P_WV, P_WO, P_OUT, P_DBG, P_WS = range(16, 50, 2)
    S_X, S_WQ, S_WKV, S_U, S_WS, S_DBG = 52, 56, 60, 64, 68, 72
    s_wv, s_b, s_g, s_k9 = 76, 77, 78, 79
    s_t = 80
    s_c, s_xo, s_col, s_tbl = 90, 91, 92, 93
    s_selA, s_selB = 94, 95
    s_st = 96
    vLane, vZero, vOne, vT = 1, 2, 3, 4

    def stamp(idx):
        if not PROF: return
        a(f"""s_memrealtime s[{s_st}:{s_st+1}]
        s_mul_i32 s{s_st+2}, s2, 12
        s_add_u32 s{s_st+2}, s{s_st+2}, s{s_wv}
        s_lshl_b32 s{s_st+2}, s{s_st+2}, 6
        s_add_u32 s{s_st+2}, s{s_st+2}, {WS_PROF + 4*idx}
        s_waitcnt lgkmcnt(0)
        v_mov_b32 v167, s{s_st}
        s_mov_b64 exec, 1
        buffer_store_dword v167, v{vZero}, {sr(S_WS,4)}, s{s_st+2} offen
        s_mov_b64 exec, -1""")
    def arrive(ctr, vaddr=None):
        a(f"""s_mov_b64 exec, 1
        ds_add_u32 v{vaddr if vaddr is not None else vZero}, v{vOne} offset:{ctr}
        s_mov_b64 exec, -1""")
    def wait_ge(ctr, target, vtmp=vT, stmp=s_t, vaddr=None, sleep=1):
        L = a.newlabel("W"); D = a.newlabel("WD")
        a("s_mov_b32 s99, 0x80000")
        a.label(L)
        a(f"""ds_read_b32 v{vtmp}, v{vaddr if vaddr is not None else vZero} offset:{ctr}
        s_waitcnt lgkmcnt(0)
        v_readfirstlane_b32 s{stmp}, v{vtmp}
        s_cmp_ge_u32 s{stmp}, {target}
        s_cbranch_scc1 {D}
        s_sleep {sleep}
        s_sub_u32 s99, s99, 1
        s_cmp_lg_u32 s99, 0
        s_cbranch_scc1 {L}""")
        a.label(D)

    a.raw(".p2align 8")
    a.label(NAME + "_kernel")
    a(f"""s_cmp_ge_u32 s2, 256
    s_cbranch_scc1 MAIN_END
    s_load_dwordx16 s[16:31], s[0:1], 0
    s_load_dwordx16 s[32:47], s[0:1], 64
    s_load_dwordx2 s[48:49], s[0:1], 128
    v_lshrrev_b32 v{vT}, 6, v0
    v_and_b32 v{vLane}, 63, v0
    v_readfirstlane_b32 s{s_wv}, v{vT}
    v_mov_b32 v{vZero}, 0
    v_mov_b32 v{vOne}, 1""")
    decode_wg(a, s_b, s_g, s_t)
    a(f"""s_cmp_lg_u32 s{s_wv}, 0
    s_cbranch_scc1 M_NOINIT
    v_lshlrev_b32 v{vT}, 2, v{vLane}
    v_cmp_eq_u32 vcc, {(C_FULL+32)//4}, v{vLane}
    s_nop 1
    v_cndmask_b32 v{vT+1}, 0, v{vOne}, vcc
    v_lshlrev_b32 v{vT+1}, 3, v{vT+1}
    ds_write_b32 v{vT}, v{vT+1}""")
    a.label("M_NOINIT")
    a(f"""s_mov_b32 s{s_selA}, 0x05040100
    s_mov_b32 s{s_selB}, 0x07060302
    s_waitcnt lgkmcnt(0)
    s_barrier""")
    srd(a, S_WS, P_WS, WS_SIZE)
    srd(a, S_DBG, P_DBG, 256)
    stamp(0)
    a(f"""s_cmp_lt_u32 s{s_wv}, 8
    s_cbranch_scc1 M_DMA
    s_cmp_lt_u32 s{s_wv}, 11
    s_cbranch_scc1 M_SSM""")
    vTr, vXA = 8, 10
    FR, ACC = 16, 132
    a.label("M_DMA")
    srd(a, S_X, P_X, 2048 * 1152)
    srd(a, S_WQ, P_WQ, 576 * 1152)
    a(f"""s_min_u32 s{s_k9}, s{s_wv}, 8
    s_cmp_ge_u32 s{s_wv}, 8
    s_cbranch_scc1 M_NOX
    s_mul_i32 s{s_xo}, s{s_b}, {64*1152}""")
    proj_issue_x(a, S_X, s_xo, s_wv, vLane, vT, s_t)
    a.label("M_NOX")
    a(f"""s_cmp_ge_u32 s{s_g}, 2
    s_cbranch_scc1 M_NOKV""")
    a(f"""s_cmp_eq_u32 s{s_g}, 0
    s_cselect_b32 s{S_WKV}, s{P_WK}, s{P_WV}
    s_cselect_b32 s{S_WKV+1}, s{P_WK+1}, s{P_WV+1}
    s_and_b32 s{S_WKV+1}, s{S_WKV+1}, 0xffff
    s_mov_b32 s{S_WKV+2}, {576*36}
    s_mov_b32 s{S_WKV+3}, 0x00020000
    s_lshl_b32 s{s_t}, s{s_k9}, 6
    v_add_u32 v{vT}, s{s_t}, v{vLane}              ; id
    v_mul_u32_u24 v{vT+1}, 21846, v{vT}
    v_lshrrev_b32 v{vT+1}, 16, v{vT+1}
    v_mul_u32_u24 v{vT+2}, 3, v{vT+1}
    v_sub_u32 v{vT+2}, v{vT}, v{vT+2}
    v_and_b32 v{vT}, 1, v{vT+1}                    ; rd
    v_bfe_u32 v{vT+3}, v{vT+1}, 1, 2               ; r
    v_lshl_add_u32 v{vT}, v{vT}, 2, v{vT+3}
    v_and_b32 v{vT+1}, 0xf8, v{vT+1}
    v_add_u32 v{vT+1}, v{vT+1}, v{vT}
    v_mul_u32_u24 v{vT}, 36, v{vT+1}
    v_lshl_add_u32 v{vT}, v{vT+2}, 4, v{vT}
    s_lshl_b32 s{s_t+1}, s{s_k9}, 10""")
    for j in range(3):
        a(f"""s_add_u32 m0, s{s_t+1}, {Z_B + j*9*1024}
        s_mov_b32 s{s_t}, {j*192*36}
        buffer_load_dwordx4 v{vT}, {sr(S_WKV,4)}, s{s_t} offen lds""")
    a(f"""s_cmp_ge_u32 s{s_wv}, 8
    s_cbranch_scc0 M_KVA
    s_waitcnt vmcnt(0)""")
    arrive(C_XRDY)
    a("s_branch M_KVW")
    a.label("M_KVA")
    vXk, vWk, vSt = 8, 10, 11
    KF, KACC = 16, 64
    a(f"""v_and_b32 v{vT}, 15, v{vLane}                ; n
    v_lshrrev_b32 v{vT+1}, 4, v{vLane}             ; kg
    v_bfe_u32 v{vT+2}, v{vLane}, 1, 3              ; key
    v_xor_b32 v{vT+2}, v{vT+2}, v{vT+1}
    s_lshr_b32 s{s_t}, s{s_wv}, 1
    s_lshl_b32 s{s_t}, s{s_t}, 11
    s_add_u32 s{s_t}, s{s_t}, {X_B}
    v_lshlrev_b32 v{vT+3}, 7, v{vT}
    v_add_u32 v{vT+3}, s{s_t}, v{vT+3}
    v_lshl_add_u32 v{vXk}, v{vT+2}, 4, v{vT+3}
    v_xor_b32 v{vT+2}, 4, v{vT+2}
    v_lshl_add_u32 v{vXk+1}, v{vT+2}, 4, v{vT+3}
    v_lshlrev_b32 v{vT+2}, 3, v{vT+1}
    v_bfe_u32 v{vT+3}, v{vLane}, 2, 2
    v_lshl_add_u32 v{vT+2}, v{vT+3}, 1, v{vT+2}
    v_mul_u32_u24 v{vT+2}, 48, v{vT+2}
    v_and_b32 v{vT+3}, 3, v{vLane}
    v_lshl_add_u32 v{vT+2}, v{vT+3}, 3, v{vT+2}
    s_and_b32 s{s_t}, s{s_wv}, 1
    s_lshl_b32 s{s_t}, s{s_t}, 5
    s_add_u32 s{s_t}, s{s_t}, {Z_B}
    v_add_u32 v{vWk}, s{s_t}, v{vT+2}
    s_lshl_b32 s{s_t+4}, s{s_b}, 1
    s_lshr_b32 s{s_t+5}, s{s_wv}, 2
    s_add_u32 s{s_t+4}, s{s_t+4}, s{s_t+5}         ; tile T
    s_lshr_b32 s{s_t+5}, s{s_t+4}, 3
    s_mul_i32 s{s_t+5}, s{s_t+5}, {CHUNK}
    s_add_u32 s{s_t+5}, s{s_t+5}, {WS_KV}
    s_and_b32 s{s_t+4}, s{s_t+4}, 7                ; tt
    s_bfe_u32 s{s_t+6}, s{s_wv}, 0x10001           ; j' = kg4&1
    s_waitcnt vmcnt(0)""")
    arrive(C_XRDY)
    wait_ge(C_XRDY, 9, vtmp=vSt)
    stamp(1)
    def kvtile(swap):
        D = 5
        def reads(S):
            f = KF + 8 * (S % 6)
            xo = (S >> 1) * 8192
            if S == 16: a(f"v_add_u32 v{vXk}, 8192, v{vXk}")
            if S == 17: a(f"v_add_u32 v{vXk+1}, 8192, v{vXk+1}")
            if S >= 16: xo -= 8192
            a(f"""ds_read_b64_tr_b16 {vr(f,2)}, v{vWk} offset:{(32*S)*48}
            ds_read_b64_tr_b16 {vr(f+2,2)}, v{vWk} offset:{(32*S+1)*48}
            ds_read_b128 {vr(f+4,4)}, v{vXk+(S&1)} offset:{xo}""")
        for S in range(D): reads(S)
        for S in range(18):
            a(f"s_waitcnt lgkmcnt({min(3*(D-1), 3*(17-S))})")
            f = KF + 8 * (S % 6)
            w, x = vr(f, 4), vr(f + 4, 4)
            A, B = (x, w) if swap else (w, x)
            c = "0" if S == 0 else vr(KACC, 4)
            a(f"v_mfma_f32_16x16x32_bf16 {vr(KACC,4)}, {A}, {B}, {c}")
            if S + D < 18: reads(S + D)
        arrive(C_KVDONE)
    a(f"""s_cmp_eq_u32 s{s_g}, 1
    s_cbranch_scc1 M_VT""")
    kvtile(False)
    a(f"""s_bitcmp1_b32 s{s_wv}, 0
    s_cbranch_scc1 M_K2
    v_lshrrev_b32 v{vT+2}, 1, v{vT+1}              ; h
    v_lshlrev_b32 v{vT+2}, 9, v{vT+2}
    v_lshl_add_u32 v{vT+2}, v{vT}, 4, v{vT+2}
    v_and_b32 v{vT+3}, 1, v{vT+1}
    v_lshl_add_u32 v{vSt}, v{vT+3}, 3, v{vT+2}
    s_lshl_b32 s{s_t}, s{s_t+4}, 10
    s_lshl_b32 s{s_t+1}, s{s_t+6}, 8
    s_add_u32 s{s_t}, s{s_t}, s{s_t+1}
    s_add_u32 s{s_t}, s{s_t}, s{s_t+5}
    v_cvt_pk_bf16_f32 v{KF}, v{KACC}, v{KACC+1}
    v_cvt_pk_bf16_f32 v{KF+1}, v{KACC+2}, v{KACC+3}
    buffer_store_dwordx2 {vr(KF,2)}, v{vSt}, {sr(S_WS,4)}, s{s_t} offen sc1
    s_branch M_KVW""")
    a.label("M_K2")
    a(f"""v_lshlrev_b32 v{vSt}, 4, v{vT}
    s_lshr_b32 s{s_t}, s{s_t+4}, 2
    s_lshl_b32 s{s_t}, s{s_t}, 10                  ; (pr>>1)*1024
    s_and_b32 s{s_t+1}, s{s_t+4}, 1
    s_lshl_b32 s{s_t+1}, s{s_t+1}, 9               ; blk*512
    s_add_u32 s{s_t}, s{s_t}, s{s_t+1}
    s_and_b32 s{s_t+1}, s{s_t+4}, 2
    s_lshl_b32 s{s_t+1}, s{s_t+1}, 2               ; (pr&1)*8
    s_add_u32 s{s_t}, s{s_t}, s{s_t+1}
    s_lshl_b32 s{s_t+1}, s{s_t+6}, 8
    s_add_u32 s{s_t}, s{s_t}, s{s_t+1}
    s_add_u32 s{s_t}, s{s_t}, s{s_t+5}
    s_add_u32 s{s_t}, s{s_t}, {KV_K2}
    v_cvt_pk_bf16_f32 v{KF}, v{KACC}, v{KACC+1}
    v_mov_b32 v{KF+1}, 0x3f803f80
    s_mov_b64 exec, 0xffff
    buffer_store_dwordx2 {vr(KF,2)}, v{vSt}, {sr(S_WS,4)}, s{s_t} offen sc1
    s_mov_b64 exec, -1
    s_branch M_KVW""")
    a.label("M_VT")
    kvtile(True)
    a(f"""s_and_b32 s{s_t}, s{s_wv}, 1
    s_lshl_b32 s{s_t}, s{s_t}, 4
    v_add_u32 v{vT}, s{s_t}, v{vT}                 ; dv
    v_mov_b32 v{vT+2}, 8
    v_add_u32 v{vT+3}, 1, v{vT}
    v_cmp_gt_u32 vcc, 18, v{vT}
    s_nop 1
    v_cndmask_b32 v{vT+2}, v{vT+2}, v{vT+3}, vcc
    v_subrev_u32 v{vT+3}, 8, v{vT}
    v_cmp_gt_u32 vcc, 16, v{vT}
    s_nop 1
    v_cndmask_b32 v{vT+2}, v{vT+2}, v{vT+3}, vcc
    v_add_u32 v{vT+3}, 5, v{vT}
    v_cmp_gt_u32 vcc, 12, v{vT}
    s_nop 1
    v_cndmask_b32 v{vT+2}, v{vT+2}, v{vT+3}, vcc
    v_cmp_gt_u32 vcc, 4, v{vT}
    s_nop 1
    v_cndmask_b32 v{vT+2}, v{vT+2}, v{vT}, vcc
    v_and_b32 v{vT+3}, 1, v{vT+1}
    v_mul_u32_u24 v{vT+3}, 304, v{vT+3}
    v_lshl_add_u32 v{vT+2}, v{vT+2}, 4, v{vT+3}
    v_lshrrev_b32 v{vT+3}, 1, v{vT+1}
    v_lshl_add_u32 v{vSt}, v{vT+3}, 3, v{vT+2}
    s_mul_i32 s{s_t}, s{s_t+4}, {VT_TILE}
    s_mul_i32 s{s_t+1}, s{s_t+6}, 608
    s_add_u32 s{s_t}, s{s_t}, s{s_t+1}
    s_add_u32 s{s_t}, s{s_t}, s{s_t+5}
    s_add_u32 s{s_t}, s{s_t}, {KV_V}
    v_cvt_pk_bf16_f32 v{KF}, v{KACC}, v{KACC+1}
    v_cvt_pk_bf16_f32 v{KF+1}, v{KACC+2}, v{KACC+3}
    v_mov_b32 v{vT+3}, 0x3f803f80
    v_cmp_eq_u32 vcc, 18, v{vT}
    s_nop 1
    v_cndmask_b32 v{KF}, v{KF}, v{vT+3}, vcc
    v_cndmask_b32 v{KF+1}, v{KF+1}, v{vT+3}, vcc
    v_cmp_gt_u32 vcc, 19, v{vT}
    s_and_b64 exec, exec, vcc
    buffer_store_dwordx2 {vr(KF,2)}, v{vSt}, {sr(S_WS,4)}, s{s_t} offen sc1
    s_mov_b64 exec, -1""")
    a.label("M_KVW")
    wait_ge(C_KVDONE, 8)
    a(f"""s_cmp_ge_u32 s{s_wv}, 8
    s_cbranch_scc1 M_NOKV
    s_waitcnt vmcnt(0)""")
    arrive(C_PUB)
    a.label("M_NOKV")
    proj_issue_w(a, S_WQ, s_g, s_k9, vLane, vT, s_t)
    a(f"""s_cmp_ge_u32 s{s_wv}, 8
    s_cbranch_scc1 M_LOADER""")
    stamp(2)
    a(f"""s_lshr_b32 s{s_t}, s{s_wv}, 1
    s_mul_i32 s{s_col}, s{s_t}, 36
    s_and_b32 s{s_t}, s{s_t}, 1
    s_lshl_b32 s{s_t+1}, s{s_t}, 2
    s_sub_u32 s{s_col}, s{s_col}, s{s_t+1}
    s_mov_b32 s{s_tbl}, {nib([0,2,1,3,2,4,4,4])}
    s_cmp_eq_u32 s{s_t}, 0
    s_cselect_b32 s{s_tbl}, {nib([0,2,1,3,4,4,0,0])}, s{s_tbl}""")
    proj_addrs(a, s_wv, vLane, vXA, vTr, vT, s_t, s_col, s_tbl)
    for rnd in range(3):
        a(f"s_waitcnt vmcnt({6-3*rnd})")
        arrive(C_WR + 4 * rnd)
        wait_ge(C_WR + 4 * rnd, 9)
        if rnd != 1: stamp(3 + rnd // 2)
        proj_round(a, rnd, vXA, vTr, FR, ACC)
        if rnd == 0: arrive(C_R0DONE)
    arrive(C_QDONE)
    r = AL.R()
    r.SA, r.SB, r.O = 8, 40, 72
    r.K1a, r.K1b, r.K2 = 88, 92, 96
    r.V = [100, 104, 108, 112]
    r.vKc, r.vKn, r.vVc, r.vVn = 116, 117, 118, 119
    vFl, vF, vVl = 120, 121, 122
    r.Q1, r.Q2 = 124, 128
    Q1, Q2, SA, SB, O, V = r.Q1, r.Q2, r.SA, r.SB, r.O, r.V
    a(f"""v_and_b32 v{vT+1}, 31, v{vLane}
    v_mov_b32 v{vT+2}, 8
    v_add_u32 v{vT+3}, 1, v{vT+1}
    v_cmp_gt_u32 vcc, 18, v{vT+1}
    s_nop 1
    v_cndmask_b32 v{vT+2}, v{vT+2}, v{vT+3}, vcc
    v_subrev_u32 v{vT}, 8, v{vT+1}
    v_cmp_gt_u32 vcc, 16, v{vT+1}
    s_nop 1
    v_cndmask_b32 v{vT+2}, v{vT+2}, v{vT}, vcc
    v_cmp_gt_u32 vcc, 12, v{vT+1}
    s_nop 1
    v_cndmask_b32 v{vT+2}, v{vT+2}, v{vT+3}, vcc
    v_add_u32 v{vT}, 9, v{vT+1}
    v_cmp_gt_u32 vcc, 8, v{vT+1}
    s_nop 1
    v_cndmask_b32 v{vT+2}, v{vT+2}, v{vT}, vcc
    v_cmp_gt_u32 vcc, 4, v{vT+1}
    s_nop 1
    v_cndmask_b32 v{vT+2}, v{vT+2}, v{vT+1}, vcc
    v_lshrrev_b32 v{vT+3}, 5, v{vLane}
    v_mul_u32_u24 v{vT+3}, 304, v{vT+3}
    v_lshl_add_u32 v{vVl}, v{vT+2}, 4, v{vT+3}
    v_add_u32 v{r.vVc}, {ATT_B+KV_V}, v{vVl}
    v_add_u32 v{r.vVn}, {CHUNK}, v{r.vVc}
    v_lshlrev_b32 v{r.vKc}, 4, v{vLane}
    v_add_u32 v{r.vKc}, {ATT_B}, v{r.vKc}
    v_add_u32 v{r.vKn}, {CHUNK}, v{r.vKc}
    v_mov_b32 v{vFl}, 0
    s_mov_b32 s{s_t}, {f32(QSCALE)}""")
    for i in range(16): a(f"v_mul_f32 v{ACC+i}, s{s_t}, v{ACC+i}")
    a(f"""s_bitcmp1_b32 s{s_wv}, 1
    s_cbranch_scc1 M_QODD""")
    for i in range(5): a(f"v_cvt_pk_bf16_f32 v{Q1+i}, v{ACC+2*i}, v{ACC+2*i+1}")
    a("s_branch M_QD")
    a.label("M_QODD")
    for i in range(4): a(f"v_cvt_pk_bf16_f32 v{Q1+i}, v{ACC+2*i+2}, v{ACC+2*i+3}")
    a(f"v_cvt_pk_bf16_f32 v{Q2}, v{ACC+14}, v{ACC+15}")
    a.label("M_QD")
    a(f"v_mov_b32 v{Q2+1}, 0")
    for i in range(16): a(f"v_mov_b32 v{O+i}, 0")
    for i in range(4):
        a(f"v_mov_b32 v{SB+24+i}, 0")
        a(f"v_mov_b32 v{V[3]+i}, 0")
    stamp(5)
    wait_ge(C_KVGO, 1)
    a(f"""v_lshlrev_b32 v{vT}, 4, v{vLane}
    s_lshl_b32 s{s_t}, s{s_wv}, 10""")
    for c in range(3):
        for i in range(3):
            if i < 2:
                a(f"s_add_u32 s{s_t+1}, s{s_t}, {c*CHUNK + i*8192}")
            else:
                a(f"""s_min_u32 s{s_t+1}, s{s_t}, 3072
                s_add_u32 s{s_t+1}, s{s_t+1}, {c*CHUNK + i*8192}""")
            a(f"""s_add_u32 m0, s{s_t+1}, {ATT_B}
            s_add_u32 s{s_t+1}, s{s_t+1}, {WS_KV}
            buffer_load_dwordx4 v{vT}, {sr(S_WS,4)}, s{s_t+1} offen sc1 lds""")
    a("s_waitcnt vmcnt(6)")
    arrive(C_FULL)
    wait_ge(C_FULL, 8)
    stamp(6)
    k1off, k2off, voff = AL.k1off, AL.k2off, AL.voff
    a(f"""ds_read_b128 {vr(r.K1a,4)}, v{r.vKc} offset:{k1off(0,0)}
    ds_read_b128 {vr(r.K1b,4)}, v{r.vKc} offset:{k1off(0,1)}
    ds_read_b128 {vr(r.K2,4)}, v{r.vKc} offset:{k2off(0)}""")
    for i in range(3): a(f"ds_read_b128 {vr(V[i],4)}, v{r.vVc} offset:{voff(0,i)}")
    a("s_waitcnt lgkmcnt(3)")
    qk = lambda S, k, p: AL.qk(a, r, S, k, p)
    qk(SA, 0, 0); qk(SA, 0, 1); a("s_nop 9"); qk(SA, 0, 2)
    a("s_nop 15\ns_nop 4")
    for i in range(10): a(f"v_max3_f32 v{SB+i}, v{SA+3*i}, v{SA+3*i+1}, v{SA+3*i+2}")
    a(f"""v_max3_f32 v{SB}, v{SB}, v{SA+30}, v{SA+31}
    v_max3_f32 v{SB}, v{SB}, v{SB+1}, v{SB+2}
    v_max3_f32 v{SB+3}, v{SB+3}, v{SB+4}, v{SB+5}
    v_max3_f32 v{SB+6}, v{SB+6}, v{SB+7}, v{SB+8}
    v_max3_f32 v{SB}, v{SB}, v{SB+3}, v{SB+6}
    v_max_f32 v{SB}, v{SB}, v{SB+9}
    v_mov_b32 v{SB+1}, v{SB}
    s_nop 1
    v_permlane32_swap_b32 v{SB}, v{SB+1}
    s_nop 1
    v_max_f32 v{SB}, v{SB}, v{SB+1}
    v_cvt_pk_bf16_f32 v{Q2+1}, -v{SB}, 0
    s_nop 1""")
    qk(SA, 0, 0); qk(SA, 0, 1)
    a(f"""ds_read_b128 {vr(r.K1a,4)}, v{r.vKc} offset:{k1off(1,0)}
    ds_read_b128 {vr(r.K1b,4)}, v{r.vKc} offset:{k1off(1,1)}
    s_nop 7""")
    qk(SA, 0, 2)
    a("s_waitcnt vmcnt(3)")
    arrive(C_FULL + 4)
    a("s_waitcnt vmcnt(0)")
    arrive(C_FULL + 8)
    a(f"""s_mov_b32 s{s_c}, 0
    s_waitcnt lgkmcnt(0)
    s_nop 15""")
    def hook(p):
        if p == 0:
            a(f"""s_mov_b64 exec, 1
            ds_add_u32 v{vFl}, v{vOne} offset:{C_FREE-4}
            s_mov_b64 exec, -1""")
        if p == 1:
            a(f"ds_read_b32 v{vF}, v{vFl} offset:{C_FULL+4}")
        if p == 2:
            ok = a.newlabel("AOK")
            a(f"""v_readfirstlane_b32 s{s_t}, v{vF}
            s_cmp_ge_u32 s{s_t}, 8
            s_cbranch_scc1 {ok}""")
            wait_ge(C_FULL + 4, 8, vtmp=vF, vaddr=vFl)
            a.label(ok)
    a.label("A_LOOP")
    for p in range(4): AL.emit_pair(a, r, p, "b", hook)
    a(f"""s_add_u32 s{s_c}, s{s_c}, 1
    v_mov_b32 v{r.vKc}, v{r.vKn}
    v_mov_b32 v{r.vVc}, v{r.vVn}
    s_mov_b32 s{s_t}, {CHUNK}
    s_cmp_eq_u32 s{s_c}, 2
    s_cselect_b32 s{s_t}, {-2*CHUNK & 0xffffffff}, s{s_t}
    s_cmp_eq_u32 s{s_c}, 5
    s_cselect_b32 s{s_t}, {-2*CHUNK & 0xffffffff}, s{s_t}
    v_add_u32 v{r.vKn}, s{s_t}, v{r.vKn}
    v_add_u32 v{r.vVn}, s{s_t}, v{r.vVn}
    v_add_u32 v{vFl}, 4, v{vFl}
    s_cmp_lt_u32 s{s_c}, 8
    s_cbranch_scc1 A_LOOP
    s_waitcnt lgkmcnt(0)
    v_mfma_f32_32x32x16_bf16 {vr(O,16)}, {vr(V[3],4)}, {vr(SB+24,4)}, {vr(O,16)}""")
    stamp(7)
    a.label("A_EPI")
    a(f"""s_lshl_b32 s{s_t}, s{s_b}, 1
    s_and_b32 s{s_t+1}, s{s_wv}, 1
    s_add_u32 s{s_t}, s{s_t}, s{s_t+1}
    s_mul_i32 s{s_t}, s{s_t}, 36864
    s_add_u32 s{s_t}, s{s_t}, {WS_O}
    s_lshr_b32 s{s_t+1}, s{s_wv}, 1                ; hh
    s_lshl_b32 s{s_t+2}, s{s_g}, 2
    s_add_u32 s{s_t+2}, s{s_t+2}, s{s_t+1}
    s_lshl_b32 s{s_t+2}, s{s_t+2}, 10
    s_add_u32 s{s_t+2}, s{s_t+2}, s{s_t}
    s_lshl_b32 s{s_t+3}, s{s_g}, 9
    s_lshl_b32 s{s_t+1}, s{s_t+1}, 2
    s_add_u32 s{s_t+3}, s{s_t+3}, s{s_t+1}
    s_add_u32 s{s_t+3}, s{s_t+3}, s{s_t}
    s_add_u32 s{s_t+3}, s{s_t+3}, 32768
    v_lshlrev_b32 v{vT}, 4, v{vLane}
    v_rcp_f32 v{vT+1}, v{O+10}
    s_nop 0""")
    for i in range(10): a(f"v_mul_f32 v{O+i}, v{O+i}, v{vT+1}")
    for i in range(5): a(f"v_cvt_pk_bf16_f32 v{SA+i}, v{O+2*i}, v{O+2*i+1}")
    a(f"""buffer_store_dwordx4 {vr(SA,4)}, v{vT}, {sr(S_WS,4)}, s{s_t+2} offen sc1
    s_mov_b64 exec, 0xffffffff
    buffer_store_dword v{SA+4}, v{vT}, {sr(S_WS,4)}, s{s_t+3} offen sc1
    s_mov_b64 exec, -1""")
    srd(a, S_OUT, P_OUT, 2048 * 2304)
    a(f"""s_lshr_b32 s{s_t}, s{s_wv}, 1
    s_mul_i32 s{s_col}, s{s_t}, 36
    s_and_b32 s{s_t}, s{s_t}, 1
    s_lshl_b32 s{s_t}, s{s_t}, 2
    s_add_u32 s{s_col}, s{s_col}, s{s_t}
    s_mov_b32 s{s_tbl}, {nib([0,1,2,3,4,4,4,4])}""")
    vTr2, vXO = 14, 15
    proj_addrs(a, s_wv, vLane, vXO, vTr2, vT, s_t, s_col, s_tbl, wbase=WO_B, lin=True)
    a("s_waitcnt vmcnt(0)")
    arrive(C_ODONE)
    stamp(8)
    wait_ge(C_OGO, 1)
    stamp(9)
    a(f"""v_lshlrev_b32 v{vT}, 4, v{vLane}
    s_mul_i32 s{s_t}, s{s_b}, 73728
    s_add_u32 s{s_t}, s{s_t}, {WS_O}
    s_and_b32 s{s_t+1}, s{s_wv}, 1
    s_mul_i32 s{s_t+1}, s{s_t+1}, 36864
    s_lshr_b32 s{s_t+2}, s{s_wv}, 1
    s_lshl_b32 s{s_t+2}, s{s_t+2}, 10
    s_add_u32 s{s_t+1}, s{s_t+1}, s{s_t+2}""")
    for j in range(9):
        a(f"""s_add_u32 m0, s{s_t+1}, {XO_B + 4096*j}
        s_add_u32 s{s_t+2}, s{s_t+1}, s{s_t}
        buffer_load_dwordx4 v{vT}, {sr(S_WS,4)}, s{s_t+2} offen sc1 lds""")
        if j < 8: a(f"s_add_u32 s{s_t}, s{s_t}, 4096")
    wait_ge(C_WORDY, 2)
    for rnd in range(3):
        a(f"s_waitcnt vmcnt({6-3*rnd})")
        arrive(C_OR + 4 * rnd)
        wait_ge(C_OR + 4 * rnd, 8)
        if rnd == 0: stamp(10)
        proj_round(a, rnd, vXO, vTr2, FR, ACC, lin=True)
    a(f"""s_lshl_b32 s{s_t}, s{s_b}, 1
    s_and_b32 s{s_t+1}, s{s_wv}, 1
    s_add_u32 s{s_t}, s{s_t}, s{s_t+1}
    s_mul_i32 s{s_t}, s{s_t}, {32*2304}
    s_mul_i32 s{s_t+1}, s{s_g}, 144
    s_add_u32 s{s_t}, s{s_t}, s{s_t+1}
    s_add_u32 s{s_t}, s{s_t}, s{s_col}
    s_add_u32 s{s_t}, s{s_t}, 1152
    v_and_b32 v{vT}, 31, v{vLane}
    v_mul_u32_u24 v{vT}, 2304, v{vT}
    v_lshrrev_b32 v{vT+1}, 5, v{vLane}
    v_lshl_add_u32 v{vT}, v{vT+1}, 3, v{vT}
    s_nop 3""")
    for i in range(6): a(f"v_cvt_pk_bf16_f32 v{FR+i}, v{ACC+2*i}, v{ACC+2*i+1}")
    a(f"""buffer_store_dwordx2 {vr(FR,2)}, v{vT}, {sr(S_OUT,4)}, s{s_t} offen
    buffer_store_dwordx2 {vr(FR+2,2)}, v{vT}, {sr(S_OUT,4)}, s{s_t} offen offset:16
    s_bitcmp1_b32 s{s_wv}, 1
    s_cbranch_scc1 A_NO5
    s_mov_b64 exec, 0xffffffff
    buffer_store_dwordx2 {vr(FR+4,2)}, v{vT}, {sr(S_OUT,4)}, s{s_t} offen offset:32
    s_mov_b64 exec, -1""")
    a.label("A_NO5")
    if PROF: a("s_waitcnt vmcnt(0)")
    stamp(11)
    a("s_endpgm")

    a.label("M_LOADER")
    vL16, vA, vE8 = 9, 10, 11
    a(f"v_lshlrev_b32 v{vL16}, 4, v{vLane}")
    a(f"""s_setprio 3
    s_lshr_b32 s{s_t+7}, s{s_g}, 1
    s_cmp_eq_u32 s{s_t+7}, 2
    s_cselect_b32 s{s_t+7}, 3, 2""")
    for rnd in range(3):
        a(f"s_waitcnt vmcnt({6-3*rnd})")
        arrive(C_WR + 4 * rnd)
    stamp(1)
    L = a.newlabel("PL"); D = a.newlabel("PD")
    a(f"""s_mov_b32 s{s_t+3}, 0x40000
    s_mov_b64 exec, 1""")
    a.label(L)
    a(f"""buffer_load_dword v{vT}, v{vZero}, {sr(S_DBG,4)}, 0 offen offset:128 sc1
    s_waitcnt vmcnt(0)
    v_readfirstlane_b32 s{s_t}, v{vT}
    s_cmp_eq_u32 s{s_t}, 1
    s_cbranch_scc1 {D}
    s_sub_u32 s{s_t+3}, s{s_t+3}, 1
    s_cmp_eq_u32 s{s_t+3}, 0
    s_cbranch_scc1 {D}
    s_sleep 2
    s_branch {L}""")
    a.label(D)
    a("s_mov_b64 exec, -1")
    stamp(2)
    wait_ge(C_QDONE, 8)
    arrive(C_KVGO)
    stamp(3)
    s_src, s_dst = s_t + 4, s_t + 5
    a(f"""s_mov_b32 s{s_src}, {WS_KV + 3*CHUNK}
    s_mov_b32 s{s_c}, 3
    v_mov_b32 v{vA}, 0
    v_mov_b32 v{vE8}, 8
    s_mov_b32 s{s_dst}, {ATT_B}""")
    a.label("LD_LOOP")
    wait_ge(C_FREE, 8, vaddr=vA, sleep=4)
    L = a.newlabel("FL")
    a(f"s_mov_b32 s{s_t+6}, 20")
    a.label(L)
    a(f"""s_mov_b32 m0, s{s_dst}
    s_add_u32 s{s_dst}, s{s_dst}, 1024
    buffer_load_dwordx4 v{vL16}, {sr(S_WS,4)}, s{s_src} offen sc1 lds
    s_add_u32 s{s_src}, s{s_src}, 1024
    s_sub_u32 s{s_t+6}, s{s_t+6}, 1
    s_cmp_lg_u32 s{s_t+6}, 0
    s_cbranch_scc1 {L}
    s_cmp_ge_u32 s{s_dst}, {ATT_B+3*CHUNK}
    s_cselect_b32 s{s_dst}, {ATT_B}, s{s_dst}
    s_waitcnt vmcnt(0)
    s_mov_b64 exec, 1
    ds_write_b32 v{vA}, v{vE8} offset:{C_FULL+12}
    s_mov_b64 exec, -1
    v_add_u32 v{vA}, 4, v{vA}
    s_add_u32 s{s_c}, s{s_c}, 1
    s_cmp_lt_u32 s{s_c}, 8
    s_cbranch_scc1 LD_LOOP""")
    stamp(5)
    wait_ge(C_ODONE, 8, sleep=2)
    wait_ge(C_SSMDONE, f"s{s_t+7}", sleep=2)
    L = a.newlabel("CL"); D = a.newlabel("CD")
    a(f"""s_lshl_b32 s{s_t+1}, s{s_b}, 7
    s_add_u32 s{s_t+1}, s{s_t+1}, {WS_SYNC}
    s_mov_b32 s{s_t+3}, 0x40000
    s_mov_b64 exec, 1
    buffer_atomic_add v{vOne}, v{vZero}, {sr(S_WS,4)}, s{s_t+1} offen""")
    a.label(L)
    a(f"""buffer_load_dword v{vT}, v{vZero}, {sr(S_WS,4)}, s{s_t+1} offen sc1
    s_waitcnt vmcnt(0)
    v_readfirstlane_b32 s{s_t}, v{vT}
    s_cmp_ge_u32 s{s_t}, 8
    s_cbranch_scc1 {D}
    s_sub_u32 s{s_t+3}, s{s_t+3}, 1
    s_cmp_eq_u32 s{s_t+3}, 0
    s_cbranch_scc1 {D}
    s_sleep 2
    s_branch {L}""")
    a.label(D)
    a(f"""ds_write_b32 v{vZero}, v{vOne} offset:{C_OGO}
    s_mov_b64 exec, -1""")
    stamp(6)
    a("s_waitcnt lgkmcnt(0)")
    a("s_endpgm")

    from gen_ssm import gen_ssm
    gen_ssm(a, dict(globals(), **locals()))
    a.label("MAIN_END")
    a("s_endpgm")
    return dict(name=NAME + "_kernel", vgpr=168, sgpr=100, grid=256, block=768, lds=LDS_MAIN)
```

```python
def gen_ssm(a, G):
    globals().update({k: v for k, v in G.items() if not k.startswith("__")})
    s_d, s_T, s_U, s_hf = 90, 91, 92, 93
    s_d0, s_sg, s_n = 50, 51, 79
    a.label("M_SSM")
    a(f"""s_sub_u32 s{s_sg}, s{s_wv}, 8
    s_and_b32 s{s_d0}, s2, 7
    s_mul_i32 s{s_d0}, s{s_d0}, 72
    s_lshr_b32 s{s_t}, s2, 3
    s_lshl_b32 s{s_t+1}, s{s_t}, 1
    s_add_u32 s{s_d0}, s{s_d0}, s{s_t+1}
    s_sub_i32 s{s_t+1}, s{s_t}, 16
    s_max_i32 s{s_t+1}, s{s_t+1}, 0
    s_min_i32 s{s_t+1}, s{s_t+1}, 8
    s_add_u32 s{s_d0}, s{s_d0}, s{s_t+1}
    s_lshr_b32 s{s_t+1}, s{s_g}, 1
    s_cmp_eq_u32 s{s_t+1}, 2
    s_cselect_b32 s{s_n}, 3, 2
    s_add_u32 s{s_d}, s{s_d0}, s{s_sg}
    s_mul_i32 s{s_U}, s{s_sg}, {U_SLOT}
    s_add_u32 s{s_U}, s{s_U}, {U_B}
    s_lshl_b32 s{s_T}, s{s_sg}, 14
    s_sub_u32 s{s_T}, {T_B[0]}, s{s_T}
    s_cmp_lt_u32 s{s_sg}, s{s_n}
    s_cbranch_scc1 S_GO
    s_cmp_lt_u32 s{s_g}, 2
    s_cbranch_scc0 MAIN_END""")
    a(f"""s_lshl_b32 s{s_t+1}, s{s_g}, 5
    s_add_u32 s{s_t+1}, s{s_t+1}, s{s_b}
    s_lshl_b32 s{s_t+1}, s{s_t+1}, 7
    s_add_u32 s{s_t+1}, s{s_t+1}, {WS_SYNC}
    s_mov_b64 exec, 1
    buffer_store_dword v{vZero}, v{vZero}, {sr(S_WS,4)}, s{s_t+1} offen sc1
    s_mov_b64 exec, -1""")
    wait_ge(C_PUB, 8)
    a(f"""s_waitcnt vmcnt(0)
    s_mov_b64 exec, 1
    v_mov_b32 v{vT}, 1
    buffer_atomic_add v{vT}, v{vZero}, {sr(S_DBG,4)}, 0 offen sc0
    s_waitcnt vmcnt(0)
    v_readfirstlane_b32 s{s_t}, v{vT}
    s_cmp_lg_u32 s{s_t}, 63
    s_cbranch_scc1 S_PUBX
    buffer_store_dword v{vOne}, v{vZero}, {sr(S_DBG,4)}, 0 offen offset:128 sc1""")
    a.label("S_PUBX")
    a("s_mov_b64 exec, -1")
    stamp(1)
    a("s_endpgm")
    a.label("S_GO")
    if opt("nossm", 0) == 1: a("s_endpgm")
    a("s_setprio 3")
    srd(a, S_U, P_U, 2048 * 1152)
    PK = 8
    vLd, vDs, vDt = 14, 15, 14
    a(f"""s_lshl_b32 s{s_t}, s{s_d}, 8
    v_lshlrev_b32 v{vT}, 2, v{vLane}
    v_add_u32 v{vT}, s{s_t}, v{vT}
    s_lshl_b32 s{s_t}, s{s_d}, 1
    v_mov_b32 v{vT+1}, s{s_t}""")
    for i, p in enumerate((P_ARE, P_AIM, P_BRE, P_BIM, P_CRE, P_CIM)):
        a(f"global_load_dword v{PK+i}, v{vT}, {sr(p,2)}")
    a(f"""global_load_ushort v{vLd}, v{vT+1}, {sr(P_LDT,2)}
    global_load_ushort v{vDs}, v{vT+1}, {sr(P_DSK,2)}
    v_cmp_eq_u32 vcc, 0, v{vLane}
    s_waitcnt vmcnt(0)
    v_lshlrev_b32 v{vLd}, 16, v{vLd}
    v_mul_f32 v{vLd}, {f32(LOG2E)}, v{vLd}
    v_exp_f32 v{vLd}, v{vLd}
    v_lshlrev_b32 v{vDs}, 16, v{vDs}
    v_cvt_pk_bf16_f32 v{vDt}, v{vLd}, v{vLd}
    v_lshlrev_b32 v{vDt}, 16, v{vDt}
    v_cndmask_b32 v{vDs}, 0, v{vDs}, vcc""")
    stamp(1)
    TMP = [16, 18, 20, 22]
    Z1, Z8, Z256, Wc, Z2, Z4, P8 = 24, 26, 28, 30, 32, 34, 36
    Y = 38
    X = 54
    U6 = 54
    vA2, vBr = 60, 61
    vE = 62
    DK = 72
    TB = 88
    WA = 152
    TR = 160
    GA = 88
    PKD = (120, 128)
    tcount = [0]
    def cmul(d, x, y):
        t = TMP[tcount[0] % 4]; tcount[0] += 1
        a(f"v_pk_mul_f32 {vr(t,2)}, {vr(x,2)}, {vr(y,2)} op_sel:[1,1] op_sel_hi:[1,0] neg_lo:[1,0]")
        return (lambda: a(f"v_pk_fma_f32 {vr(d,2)}, {vr(x,2)}, {vr(y,2)}, {vr(t,2)} op_sel:[0,0,0] op_sel_hi:[0,1,1]"))
    def cmuls(lst):
        for i in range(0, len(lst), 4):
            fin = [cmul(*x) for x in lst[i:i+4]]
            for f in fin: f()
    y = lambda j: Y + 2 * j
    x = lambda j: Wc if j == 0 else X + 2 * (j - 1)

    def s1(half):
        def dst(tbl, grp):
            return TB + 32 * tbl + 8 * grp if half == 0 else PKD[tbl]
        def pack(tbl, grp, k, p, q):
            b = dst(tbl, grp); neg = "-" if tbl == 0 else ""
            o = lambda r, off, n: "0" if r is None else f"{n}v{r+off}"
            a(f"v_cvt_pk_bf16_f32 v{b+k}, {o(p,0,'')}, {o(q,0,'')}")
            a(f"v_cvt_pk_bf16_f32 v{b+4+k}, {o(p,1,neg)}, {o(q,1,neg)}")
        def flush(tbl, grp):
            if half == 0: return
            b = dst(tbl, grp)
            a(f"ds_write_b128 v{WA+grp}, {vr(b,4)} offset:{tbl*8192}")
            a(f"ds_write_b128 v{WA+4+grp}, {vr(b+4,4)} offset:{tbl*8192}")
        def packY(grp):
            for k in range(4): pack(1, grp, k, y(2*k), y(2*k+1))
            flush(1, grp)
        for i in range(6):
            a(f"v_lshlrev_b32 v{U6+i}, 16, v{PK+i}" if half == 0 else f"v_and_b32 v{U6+i}, 0xffff0000, v{PK+i}")
        Ar, Ai, Br, Bi, Cr, Ci = [U6 + i for i in range(6)]
        a(f"""v_mul_f32 v{vA2}, v{Ar}, v{vDt}
        v_mul_f32 v{vBr}, v{Ai}, v{vDt}
        v_mul_f32 v{vA2}, {f32(LOG2E)}, v{vA2}
        v_mul_f32 v{vBr}, 0.15915494, v{vBr}
        v_mul_f32 v{vE}, v{Ci}, v{Bi}
        v_mul_f32 v{vE+1}, v{Ci}, v{Br}
        v_fma_f32 v{Wc}, v{Cr}, v{Br}, -v{vE}
        v_fma_f32 v{Wc+1}, v{Cr}, v{Bi}, v{vE+1}
        v_mul_f32 v{Wc}, v{Wc}, v{vDt}
        v_mul_f32 v{Wc+1}, v{Wc+1}, v{vDt}""")
        anchors = [(Z1, 1.0), (Z8, 8.0), (Z256, 256.0)]
        for k, (z, e) in enumerate(anchors):
            a(f"""v_mul_f32 v{vE+2*k}, {f32(e)}, v{vA2}
            v_mul_f32 v{vE+2*k+1}, {f32(e)}, v{vBr}""")
        for k, (z, e) in enumerate(anchors):
            a(f"""v_exp_f32 v{vE+2*k}, v{vE+2*k}
            v_fract_f32 v{vE+2*k+1}, v{vE+2*k+1}""")
        for k, (z, e) in enumerate(anchors):
            a(f"""v_cos_f32 v{z}, v{vE+2*k+1}
            v_sin_f32 v{z+1}, v{vE+2*k+1}""")
        a("s_nop 0")
        for k, (z, e) in enumerate(anchors):
            a(f"""v_mul_f32 v{z}, v{z}, v{vE+2*k}
            v_mul_f32 v{z+1}, v{z+1}, v{vE+2*k}""")
        a(f"""v_mov_b32 v{y(0)}, 1.0
        v_mov_b32 v{y(0)+1}, 0
        v_mov_b32 v{y(1)}, v{Z8}
        v_mov_b32 v{y(1)+1}, v{Z8+1}""")
        cmuls([(y(2), Z8, Z8), (Z2, Z1, Z1), (x(1), Wc, Z1), (x(8), Wc, Z8)])
        cmuls([(y(3), y(2), Z8), (y(4), y(2), y(2)), (Z4, Z2, Z2), (x(2), Wc, Z2), (x(3), x(1), Z2)])
        cmuls([(y(5), y(4), Z8), (y(6), y(4), y(2)), (y(7), y(4), y(3)), (P8, y(4), y(4)),
               (x(4), Wc, Z4), (x(5), x(1), Z4), (x(6), x(2), Z4), (x(7), x(3), Z4)])
        packY(0)
        for k in range(4): pack(0, 0, k, x(2*k), x(2*k+1))
        flush(0, 0)
        Zm = lambda js: [(x(j), x(j), Z256) for j in js]
        Ym = lambda js: [(y(j), y(j), P8) for j in js]
        cmuls(Zm([0, 2, 4, 6, 8]) + Ym(range(8)))
        pack(0, 1, 0, x(0), x(2)); pack(0, 1, 1, x(4), None); pack(0, 1, 2, x(4), x(6)); pack(0, 1, 3, x(8), None)
        flush(0, 1)
        packY(1)
        cmuls(Zm([0, 4, 8]) + Ym(range(5)))
        pack(0, 2, 0, x(0), x(4)); pack(0, 2, 1, x(8), None)
        cmuls(Zm([0, 4, 8]) + Ym(range(5, 8)))
        pack(0, 2, 2, x(0), x(4)); pack(0, 2, 3, x(8), None)
        flush(0, 2)
        packY(2)
        for k in range(4):
            cmuls(Zm([0, 8]) + Ym([2*k, 2*k+1]))
            pack(0, 3, k, x(0), x(8))
        flush(0, 3)
        packY(3)

    FR = 16
    def s2(half):
        NS = 7
        def rd(s):
            f = FR + 8 * (s % NS)
            for tbl in range(2):
                for r_ in range(2):
                    a(f"ds_read_b64_tr_b16 {vr(f+4*tbl+2*r_,2)}, v{TR+r_} offset:{tbl*8192+s*1024}")
        def mm(k):
            f = FR + 8 * (k % NS)
            c = "0" if (half == 0 and k == 0) else vr(DK, 16)
            a(f"v_mfma_f32_32x32x16_bf16 {vr(DK,16)}, {vr(f,4)}, {vr(f+4,4)}, {c}")
        for s in range(8):
            rd(s)
            if s >= 2:
                a("s_waitcnt lgkmcnt(8)"); mm(s - 2)
        a("s_waitcnt lgkmcnt(4)"); mm(6)
        a("s_waitcnt lgkmcnt(0)"); mm(7)

    s1(0)
    a(f"""v_and_b32 v{vT}, 7, v{vLane}
    v_lshlrev_b32 v{vT+1}, 7, v{vLane}
    v_add_u32 v{vT+1}, s{s_T}, v{vT+1}""")
    for ci in range(8):
        a(f"""v_xor_b32 v{vT+2}, {ci}, v{vT}
        v_lshl_add_u32 v{WA+ci}, v{vT+2}, 4, v{vT+1}""")
    a(f"""v_lshrrev_b32 v{vT}, 5, v{vLane}
    v_lshlrev_b32 v{vT}, 2, v{vT}
    v_bfe_u32 v{vT+1}, v{vLane}, 3, 1
    v_add_u32 v{vT}, v{vT}, v{vT+1}
    v_bfe_u32 v{vT+1}, v{vLane}, 2, 1
    v_lshlrev_b32 v{vT+1}, 2, v{vT+1}
    v_bfe_u32 v{vT+2}, v{vLane}, 4, 1
    v_lshl_add_u32 v{vT+1}, v{vT+2}, 1, v{vT+1}
    v_bfe_u32 v{vT+2}, v{vLane}, 1, 1
    v_add_u32 v{vT+1}, v{vT+1}, v{vT+2}            ; ci
    v_and_b32 v{vT+2}, 1, v{vLane}
    v_lshlrev_b32 v{vT+2}, 3, v{vT+2}
    v_add_u32 v{vT+2}, s{s_T}, v{vT+2}""")
    for r_ in range(2):
        a(f"""v_xor_b32 v{vT+3}, v{vT}, v{vT+1}
        v_lshl_add_u32 v{TR+r_}, v{vT+3}, 4, v{vT+2}
        v_lshl_add_u32 v{TR+r_}, v{vT}, 7, v{TR+r_}""")
        if r_ == 0: a(f"v_add_u32 v{vT}, 2, v{vT}")
    stamp(2)
    wait_ge(C_QDONE, 8, sleep=4)
    stamp(3)
    for tbl in range(2):
        for grp in range(4):
            b = TB + 32 * tbl + 8 * grp
            a(f"ds_write_b128 v{WA+grp}, {vr(b,4)} offset:{tbl*8192}")
            a(f"ds_write_b128 v{WA+4+grp}, {vr(b+4,4)} offset:{tbl*8192}")
    s2(0)
    s1(1)
    vG = 162
    a(f"""s_cmp_ge_u32 s{s_sg}, 2
    s_cbranch_scc1 S_NOG1""")
    wait_ge(C_FULL + 8, 8, sleep=4)
    a(f"""    v_mul_u32_u24 v{vG}, {8*1152}, v{vLane}
    s_mul_i32 s{s_t}, s{s_sg}, {1024*1152}
    s_lshl_b32 s{s_t+1}, s{s_d0}, 1
    s_add_u32 s{s_t}, s{s_t}, s{s_t+1}""")
    for rnd in range(2):
        for i in range(8):
            a(f"buffer_load_dwordx2 {vr(GA+16*rnd+2*i,2)}, v{vG}, {sr(S_U,4)}, s{s_t} offen")
            if (rnd, i) != (1, 7):
                a(f"s_add_u32 s{s_t}, s{s_t}, {1152 if i < 7 else 512*1152 - 7*1152}")
    a.label("S_NOG1")
    s2(1)
    stamp(4)
    vj, vh, A0, Am, AH0, AH1, B0, Bm, C0, Cm = range(16, 26)
    ZR = 28
    a(f"""v_mov_b32 v{ZR}, 0
    v_mov_b32 v{ZR+1}, 0
    v_mov_b32 v{ZR+2}, 0
    v_mov_b32 v{ZR+3}, 0
    v_lshlrev_b32 v{vT+2}, 4, v{vLane}
    v_add_u32 v{vT}, s{s_T}, v{vT+2}""")
    for cp in range(2):
        base = KC_OFF + cp * KC_COPY + 31 * 144
        a(f"""ds_write_b128 v{vT}, {vr(ZR,4)} offset:{base}
        ds_write_b128 v{vT}, {vr(ZR,4)} offset:{base+1024}
        ds_write_b128 v{vT}, {vr(ZR,4)} offset:{base+2304-1024}""")
    a(f"""s_mul_i32 s{s_t+2}, s{s_d}, {UT_STRIDE}
    s_add_u32 s{s_t+2}, s{s_t+2}, {WS_UT}
    s_mov_b64 exec, 0xff
    buffer_store_dwordx4 {vr(ZR,4)}, v{vT+2}, {sr(S_WS,4)}, s{s_t+2} offen
    s_mov_b64 exec, -1""")
    def addr(dst, q0):
        a(f"""v_lshlrev_b32 v{vT}, 3, v{vj}
        v_sub_u32 v{vT}, {q0}, v{vT}
        v_ashrrev_i32 v{vT+1}, 6, v{vT}
        v_mul_i32_i24 v{vT+1}, 144, v{vT+1}
        v_and_b32 v{vT}, 63, v{vT}
        v_lshl_add_u32 v{dst}, v{vT}, 1, v{vT+1}
        v_add_u32 v{dst}, s{s_t}, v{dst}""")
    a(f"""v_and_b32 v{vj}, 31, v{vLane}
    v_lshrrev_b32 v{vh}, 5, v{vLane}
    s_add_u32 s{s_t}, s{s_T}, {KC_OFF}""")
    addr(A0, 248); addr(Am, 244)
    a(f"""v_cmp_eq_u32 vcc, 1, v{vh}
    v_lshlrev_b32 v{vT}, 3, v{vh}
    v_sub_u32 v{AH1}, v{A0}, v{vT}
    v_add_u32 v{AH1}, 8, v{AH1}
    v_cndmask_b32 v{AH0}, v{A0}, v{Am}, vcc
    v_mul_u32_u24 v{vT}, 576, v{vh}
    v_sub_u32 v{B0}, v{A0}, v{vT}
    v_sub_u32 v{Bm}, v{Am}, v{vT}
    v_sub_u32 v{C0}, v{B0}, v{vT}
    v_sub_u32 v{Cm}, v{Bm}, v{vT}
    v_and_b32 v{vT}, 1, v{vj}
    v_cmp_eq_u32 vcc, 1, v{vT}
    v_add_f32 v{DK}, v{DK}, v{vDs}""")
    d = lambda r_: f"v{DK+r_}"
    E0 = 32
    a(f"""v_cvt_pk_bf16_f32 v{E0}, {d(3)}, {d(2)}
    v_cvt_pk_bf16_f32 v{E0+1}, {d(1)}, {d(0)}
    v_cvt_pk_bf16_f32 v{E0+2}, {d(6)}, {d(5)}
    v_cvt_pk_bf16_f32 v{E0+3}, {d(4)}, {d(4)}
    v_cvt_pk_bf16_f32 v{E0+4}, {d(10)}, {d(10)}
    v_cvt_pk_bf16_f32 v{E0+5}, {d(9)}, {d(9)}
    v_cvt_pk_bf16_f32 v{E0+6}, {d(9)}, {d(8)}
    v_cvt_pk_bf16_f32 v{E0+7}, {d(8)}, {d(8)}
    v_cndmask_b32 v{vT}, {d(12)}, {d(13)}, vcc
    v_cndmask_b32 v{vT+1}, {d(14)}, {d(15)}, vcc
    v_cvt_pk_bf16_f32 v{E0+8}, {d(13)}, {d(13)}
    v_cvt_pk_bf16_f32 v{E0+9}, {d(13)}, v{vT}
    v_cvt_pk_bf16_f32 v{E0+10}, {d(12)}, {d(12)}
    v_cvt_pk_bf16_f32 v{E0+11}, {d(12)}, {d(12)}
    v_cvt_pk_bf16_f32 v{E0+12}, {d(15)}, {d(15)}
    v_cvt_pk_bf16_f32 v{E0+13}, {d(15)}, v{vT+1}
    v_cvt_pk_bf16_f32 v{E0+14}, {d(14)}, {d(14)}
    v_cvt_pk_bf16_f32 v{E0+15}, {d(14)}, {d(14)}""")
    blk = lambda m: 576 * (7 - m)
    a(f"""ds_write_b64 v{AH0}, {vr(E0,2)} offset:{blk(0)}
    ds_write_b64 v{AH1}, {vr(E0,2)} offset:{blk(0)+KC_COPY}
    ds_write_b64 v{AH0}, {vr(E0+2,2)} offset:{blk(1)}
    ds_write_b64 v{AH1}, {vr(E0+2,2)} offset:{blk(1)+KC_COPY}
    ds_write_b64 v{Bm}, {vr(E0+4,2)} offset:{blk(2)}
    ds_write_b64 v{B0}, {vr(E0+6,2)} offset:{blk(2)}
    ds_write_b128 v{B0}, {vr(E0+4,4)} offset:{blk(2)+KC_COPY}
    ds_write_b64 v{Cm}, {vr(E0+8,2)} offset:{blk(4)}
    ds_write_b64 v{C0}, {vr(E0+10,2)} offset:{blk(4)}
    ds_write_b128 v{C0}, {vr(E0+8,4)} offset:{blk(4)+KC_COPY}
    ds_write_b64 v{Cm}, {vr(E0+12,2)} offset:{blk(5)}
    ds_write_b64 v{C0}, {vr(E0+14,2)} offset:{blk(5)}
    ds_write_b128 v{C0}, {vr(E0+12,4)} offset:{blk(5)+KC_COPY}""")
    stamp(5)
    GO = 48
    a(f"""s_cmp_ge_u32 s{s_sg}, 2
    s_cbranch_scc1 S_NOG2
    s_mul_i32 s{s_t}, s{s_d0}, {UT_STRIDE}
    s_lshl_b32 s{s_t+1}, s{s_sg}, 11
    s_add_u32 s{s_t}, s{s_t}, s{s_t+1}
    s_add_u32 s{s_t}, s{s_t}, {WS_UT + 128}
    s_waitcnt vmcnt(0)""")
    for e in range(3):
        if e == 2:
            a(f"""s_cmp_lt_u32 s{s_n}, 3
            s_cbranch_scc1 S_G2X""")
        for rnd in range(2):
            o = GO + 8 * e + 4 * rnd
            for k in range(4):
                a(f"v_perm_b32 v{o+k}, v{GA+16*rnd+2*(2*k+1)+(e>>1)}, v{GA+16*rnd+2*(2*k)+(e>>1)}, s{s_selA if (e & 1) == 0 else s_selB}")
            a(f"buffer_store_dwordx4 {vr(o,4)}, v{vT+2}, {sr(S_WS,4)}, s{s_t} offen offset:{1024*rnd}")
        if e < 2: a(f"s_add_u32 s{s_t}, s{s_t}, {UT_STRIDE}")
    a.label("S_G2X")
    a("s_waitcnt vmcnt(0)")
    arrive(C_UT)
    a.label("S_NOG2")
    a("s_waitcnt vmcnt(0)")
    wait_ge(C_UT, 2, sleep=4)
    stamp(6)
    a(f"""v_lshlrev_b32 v{vT}, 4, v{vLane}
    s_add_u32 s{s_t}, s{s_t+2}, 10
    s_mov_b32 s{s_t+1}, s{s_U}
    s_mov_b32 s{s_t+2}, 0""")
    a.label("S_UDMA")
    for i in range(5):
        a(f"s_add_u32 m0, s{s_t+1}, {1024*i}")
        a(f"s_add_u32 s{s_t+3}, s{s_t}, {1024*i}")
        if i == 4: a("s_mov_b64 exec, 0xff")
        a(f"buffer_load_dwordx4 v{vT}, {sr(S_WS,4)}, s{s_t+3} offen sc1 lds")
    a(f"""s_mov_b64 exec, -1
    s_add_u32 s{s_t}, s{s_t}, 2
    s_add_u32 s{s_t+1}, s{s_t+1}, {U_COPY}
    s_add_u32 s{s_t+2}, s{s_t+2}, 1
    s_cmp_lt_u32 s{s_t+2}, 4
    s_cbranch_scc1 S_UDMA""")
    vA, vB, vO = 8, 9, 10
    a(f"""v_and_b32 v{vT}, 3, v{vLane}
    v_mul_u32_u24 v{vA}, {U_COPY}, v{vT}
    v_bfe_u32 v{vT}, v{vLane}, 2, 3
    v_add_u32 v{vT}, v{vT}, v{vh}
    v_lshl_add_u32 v{vA}, v{vT}, 4, v{vA}
    v_add_u32 v{vA}, s{s_U}, v{vA}
    v_and_b32 v{vT}, 1, v{vLane}
    v_mul_u32_u24 v{vB}, {KC_COPY}, v{vT}
    v_lshlrev_b32 v{vO}, 3, v{vT}
    v_bfe_u32 v{vT}, v{vLane}, 1, 4
    v_lshl_add_u32 v{vO}, v{vT}, 7, v{vO}
    v_lshl_add_u32 v{vO}, v{vh}, 4, v{vO}
    v_sub_u32 v{vT}, 15, v{vT}
    v_mul_u32_u24 v{vT}, 144, v{vT}
    v_add_u32 v{vB}, v{vB}, v{vT}
    v_lshl_add_u32 v{vB}, v{vh}, 4, v{vB}
    s_add_u32 s{s_t}, s{s_T}, {KC_OFF}
    v_add_u32 v{vB}, s{s_t}, v{vB}""")
    Y0, Y1, F = 16, 32, 48
    for i in range(32): a(f"v_mov_b32 v{Y0+i}, 0")
    def loads(s):
        f = F + 16 * (s & 3)
        bo = (s >> 2) * 144 + 32 * (s & 3)
        a(f"""ds_read_b128 {vr(f,4)}, v{vA} offset:{32*s}
        ds_read_b128 {vr(f+4,4)}, v{vB} offset:{bo+2304}
        ds_read_b128 {vr(f+8,4)}, v{vB} offset:{bo}
        ds_read_b128 {vr(f+12,4)}, v{vA} offset:{32*s+2048}""")
    a(f"""s_mov_b32 s{s_hf}, 0
    s_waitcnt vmcnt(0)""")
    stamp(7)
    if opt("nossm", 0) == 2: a("s_endpgm")
    a(f"s_setprio {CONVPRIO}")
    for s in range(CONVPF): loads(s)
    a.label("S_CONV")
    for s in range(4):
        loads(s + CONVPF)
        f = F + 16 * s
        a(f"""s_waitcnt lgkmcnt({4*CONVPF})
        v_mfma_f32_32x32x16_bf16 {vr(Y0,16)}, {vr(f,4)}, {vr(f+4,4)}, {vr(Y0,16)}
        v_mfma_f32_32x32x16_bf16 {vr(Y1,16)}, {vr(f,4)}, {vr(f+8,4)}, {vr(Y1,16)}
        v_mfma_f32_32x32x16_bf16 {vr(Y1,16)}, {vr(f+12,4)}, {vr(f+4,4)}, {vr(Y1,16)}""")
    a(f"""v_add_u32 v{vA}, 128, v{vA}
    v_add_u32 v{vB}, 144, v{vB}
    s_add_u32 s{s_hf}, s{s_hf}, 1
    s_cmp_lt_u32 s{s_hf}, 16
    s_cbranch_scc1 S_CONV
    s_lshl_b32 s{s_t}, s{s_d}, 12
    s_add_u32 s{s_t}, s{s_t}, {WS_YT}
    s_nop 7
    s_waitcnt lgkmcnt(0)""")
    a(f"v_add_u32 v{vO}, s{s_U}, v{vO}")
    for tau in range(2):
        for q in range(4):
            r_ = Y0 + 16 * tau + 4 * q
            o = F + 2 * (4 * tau + q)
            a(f"""v_cvt_pk_bf16_f32 v{o}, v{r_}, v{r_+1}
            v_cvt_pk_bf16_f32 v{o+1}, v{r_+2}, v{r_+3}
            ds_write_b64 v{vO}, {vr(o,2)} offset:{32*q+2048*tau}""")
    a(f"""v_lshlrev_b32 v{vT+2}, 4, v{vLane}
    v_add_u32 v{vT}, s{s_U}, v{vT+2}""")
    for i in range(4): a(f"ds_read_b128 {vr(Y0+4*i,4)}, v{vT} offset:{1024*i}")
    a("s_waitcnt lgkmcnt(0)")
    for i in range(4): a(f"buffer_store_dwordx4 {vr(Y0+4*i,4)}, v{vT+2}, {sr(S_WS,4)}, s{s_t} offen offset:{1024*i} sc1")
    arrive(C_SSMDONE)
    a(f"""s_and_b32 s{s_t+1}, s2, 7
    s_lshl_b32 s{s_t+1}, s{s_t+1}, 7
    s_add_u32 s{s_t+1}, s{s_t+1}, {WS_SYNC + 32*128}
    s_waitcnt vmcnt(0)
    s_mov_b64 exec, 1
    v_mov_b32 v{vT}, 1
    buffer_atomic_add v{vT}, v{vZero}, {sr(S_WS,4)}, s{s_t+1} offen sc0
    s_waitcnt vmcnt(0)
    v_readfirstlane_b32 s{s_t}, v{vT}
    s_cmp_lg_u32 s{s_t}, 71
    s_cbranch_scc1 S_YX
    buffer_store_dword v{vOne}, v{vZero}, {sr(S_WS,4)}, s{s_t+1} offen offset:1024 sc1""")
    a.label("S_YX")
    a("s_mov_b64 exec, -1")
    stamp(8)
    a(f"""s_cmp_ge_u32 s{s_sg}, 2
    s_cbranch_scc1 MAIN_END""")
    srd(a, S_WO, P_WO, 576 * 1152)
    srd(a, S_OUT, P_OUT, 2048 * 2304)
    wait_ge(C_SSMDONE, f"s{s_n}", sleep=4)
    vR, vC, vE_, vA_, vS0, vS1 = 8, 9, 10, 11, 12, 13
    a(f"s_mov_b32 s{s_hf}, s{s_sg}")
    a.label("S_WOL")
    a(f"""s_lshl_b32 s{s_t}, s{s_hf}, 6
    v_add_u32 v{vT}, s{s_t}, v{vLane}
    v_mul_u32_u24 v{vR}, 7282, v{vT}
    v_lshrrev_b32 v{vR}, 16, v{vR}                 ; rho'
    v_mul_u32_u24 v{vC}, 9, v{vR}
    v_sub_u32 v{vC}, v{vT}, v{vC}                  ; ch
    v_and_b32 v{vE_}, 3, v{vR}
    v_bfe_u32 v{vT}, v{vR}, 2, 2
    v_lshl_add_u32 v{vE_}, v{vE_}, 2, v{vT}        ; e = 8h+4rd+r
    v_lshrrev_b32 v{vA_}, 4, v{vR}                 ; a
    v_mul_u32_u24 v{vS0}, 18, v{vA_}
    v_add_u32 v{vS0}, v{vS0}, v{vE_}
    v_mul_u32_u24 v{vS0}, 1152, v{vS0}
    v_lshl_add_u32 v{vS0}, v{vC}, 4, v{vS0}
    v_lshrrev_b32 v{vT}, 1, v{vE_}
    v_lshl_add_u32 v{vT}, v{vA_}, 3, v{vT}
    v_mul_u32_u24 v{vS1}, 18, v{vT}
    v_and_b32 v{vT}, 1, v{vE_}
    v_add3_u32 v{vS1}, v{vS1}, v{vT}, 16
    v_mul_u32_u24 v{vS1}, 1152, v{vS1}
    v_lshl_add_u32 v{vS1}, v{vC}, 4, v{vS1}
    s_mul_i32 s{s_t}, s{s_g}, 144
    s_lshl_b32 s{s_t+1}, s{s_hf}, 10
    s_add_u32 s{s_t+1}, s{s_t+1}, {WO_B}
    s_add_u32 m0, s{s_t+1}, {8*9*1024}
    s_mov_b32 s{s_t+2}, 8
    buffer_load_dwordx4 v{vS1}, {sr(S_WO,4)}, s{s_t} offen lds""")
    a.label("S_WOP")
    a(f"""s_mov_b32 m0, s{s_t+1}
    s_add_u32 s{s_t+1}, s{s_t+1}, {9*1024}
    buffer_load_dwordx4 v{vS0}, {sr(S_WO,4)}, s{s_t} offen lds
    s_add_u32 s{s_t}, s{s_t}, {72*1152}
    s_sub_u32 s{s_t+2}, s{s_t+2}, 1
    s_cmp_lg_u32 s{s_t+2}, 0
    s_cbranch_scc1 S_WOP
    s_add_u32 s{s_hf}, s{s_hf}, 2
    s_cmp_lt_u32 s{s_hf}, 9
    s_cbranch_scc1 S_WOL
    s_waitcnt vmcnt(0)""")
    arrive(C_WORDY)
    stamp(9)
    L = a.newlabel("YL"); D = a.newlabel("YD")
    a(f"""s_lshl_b32 s{s_t+1}, s{s_g}, 7
    s_add_u32 s{s_t+1}, s{s_t+1}, {WS_SYNC + 40*128}
    s_mov_b32 s{s_t+3}, 0x20000
    s_mov_b64 exec, 1""")
    a.label(L)
    a(f"""buffer_load_dword v{vT}, v{vZero}, {sr(S_WS,4)}, s{s_t+1} offen sc1
    s_waitcnt vmcnt(0)
    v_readfirstlane_b32 s{s_t}, v{vT}
    s_cmp_eq_u32 s{s_t}, 1
    s_cbranch_scc1 {D}
    s_sub_u32 s{s_t+3}, s{s_t+3}, 1
    s_cmp_eq_u32 s{s_t+3}, 0
    s_cbranch_scc1 {D}
    s_sleep 8
    s_branch {L}""")
    a.label(D)
    TL, TO = 16, 48
    a(f"""s_mov_b64 exec, -1
    v_mul_u32_u24 v{vT+2}, 7282, v{vLane}
    v_lshrrev_b32 v{vT+2}, 16, v{vT+2}           ; lane/9
    v_mul_u32_u24 v{vT+3}, 9, v{vT+2}
    v_sub_u32 v{vT+3}, v{vLane}, v{vT+3}         ; cg
    v_lshlrev_b32 v{vT}, 15, v{vT+3}
    v_lshl_add_u32 v{vT}, v{vT+2}, 4, v{vT}
    v_mul_u32_u24 v{vT+1}, {8*2304}, v{vT+2}
    v_lshl_add_u32 v{vT+1}, v{vT+3}, 4, v{vT+1}
    s_mul_i32 s{s_t+1}, s{s_g}, {72*4096}
    s_lshl_b32 s{s_t+2}, s{s_b}, 7
    s_add_u32 s{s_t+1}, s{s_t+1}, s{s_t+2}
    s_lshl_b32 s{s_t+2}, s{s_sg}, 6
    s_add_u32 s{s_t+1}, s{s_t+1}, s{s_t+2}
    s_add_u32 s{s_t+1}, s{s_t+1}, {WS_YT}
    s_lshl_b32 s{s_t+2}, s{s_b}, 1
    s_add_u32 s{s_t+2}, s{s_t+2}, s{s_sg}
    s_mul_i32 s{s_t+2}, s{s_t+2}, {32*2304}
    s_mul_i32 s{s_t}, s{s_g}, 144
    s_add_u32 s{s_t+2}, s{s_t+2}, s{s_t}
    s_mov_b32 exec_lo, -1
    s_mov_b32 exec_hi, 0xf""")
    for i in range(8):
        a(f"buffer_load_dwordx4 {vr(TL+4*i,4)}, v{vT}, {sr(S_WS,4)}, s{s_t+1} offen sc1")
        if i < 7: a(f"s_add_u32 s{s_t+1}, s{s_t+1}, 4096")
    a("s_waitcnt vmcnt(0)")
    transpose8x8(a, TL, TO, f"s{s_selA}", f"s{s_selB}")
    for t in range(8):
        a(f"buffer_store_dwordx4 {vr(TO+4*t,4)}, v{vT+1}, {sr(S_OUT,4)}, s{s_t+2} offen")
        if t < 7: a(f"s_add_u32 s{s_t+2}, s{s_t+2}, 2304")
    a("s_mov_b64 exec, -1")
    stamp(10)
    a("s_endpgm")
```

```python
import sys, math, struct
sys.path.insert(0, "gen")
from asmlib import Asm, check_hazards

PROF = "--prof" in sys.argv
CONVPRIO = int([x.split("=")[1] for x in sys.argv if x.startswith("--convprio=")][0]) if any(x.startswith("--convprio=") for x in sys.argv) else 0
def opt(n, d):
    v = [x.split("=")[1] for x in sys.argv if x.startswith("--" + n + "=")]
    return int(v[0]) if v else d
CONVPF = opt("convpf", 2)
NAME = "concat_heads__ssm_conv_s4__grouped_kv_mqa__prompt"

UT_STRIDE = 4224
WS_UT = 0x000000
WS_KV = 0x260000
WS_O = 0x290000
WS_YT = 0x4D0000
WS_SYNC = 0x7F0000
WS_PROF = 0x710000
WS_SIZE = 0x800000
CHUNK = 20480
KV_K2 = 8192
KV_V = 10240
VT_TILE = 1216

ATT_B = 256
W_B = 256
Z_B = W_B + 6 * 9216
X_B = W_B + 82944
U_B = 63232
U_SLOT = 17152
U_COPY = 4288
T_B = [147456, 131072, 114688]
KC_OFF = 32
KC_COPY = 6784
LDS_MAIN = 163840
XO_B = 256
WO_B = 163840 - 82944

def f32(x):
    return "0x%08x" % struct.unpack("<I", struct.pack("<f", x))[0]
LOG2E = 1.4426950408889634
QSCALE = (18 ** -0.5) * LOG2E

def vr(b, n=1):
    return f"v{b}" if n == 1 else f"v[{b}:{b+n-1}]"
def sr(b, n=1):
    return f"s{b}" if n == 1 else f"s[{b}:{b+n-1}]"

def srd(a, dst, ptr, nbytes):
    a(f"""s_mov_b32 s{dst}, s{ptr}
    s_and_b32 s{dst+1}, s{ptr+1}, 0xffff
    s_mov_b32 s{dst+2}, {nbytes}
    s_mov_b32 s{dst+3}, 0x00020000""")

def transpose8x8(a, L, O, selA, selB):
    for dw in range(4):
        for e in range(2):
            c = 2 * dw + e
            for k in range(4):
                a(f"v_perm_b32 v{O+4*c+k}, v{L+4*(2*k+1)+dw}, v{L+4*(2*k)+dw}, {selA if e == 0 else selB}")

def proj_issue_x(a, S_X, s_xoff, s_wv, vLane, vT, s_tmp, flags=""):
    a(f"""v_lshrrev_b32 v{vT}, 3, v{vLane}             ; row8
    s_and_b32 s{s_tmp}, s{s_wv}, 1
    s_lshl_b32 s{s_tmp}, s{s_tmp}, 2
    v_lshrrev_b32 v{vT+1}, 4, v{vLane}
    v_add_u32 v{vT+1}, s{s_tmp}, v{vT+1}
    v_and_b32 v{vT+2}, 7, v{vLane}
    v_xor_b32 v{vT+1}, v{vT+1}, v{vT+2}
    v_mul_u32_u24 v{vT}, 1152, v{vT}
    v_lshl_add_u32 v{vT}, v{vT+1}, 4, v{vT}
    s_mul_i32 s{s_tmp}, s{s_wv}, {8*1152}
    s_add_u32 s{s_tmp}, s{s_tmp}, s{s_xoff}
    s_lshl_b32 s{s_tmp+1}, s{s_wv}, 10
    s_add_u32 s{s_tmp+1}, s{s_tmp+1}, {X_B}""")
    for p in range(9):
        a(f"s_mov_b32 m0, s{s_tmp+1}")
        a(f"s_add_u32 s{s_tmp+1}, s{s_tmp+1}, 8192" if p < 8 else "s_nop 0")
        a(f"buffer_load_dwordx4 v{vT}, {sr(S_X,4)}, s{s_tmp} offen {flags} lds")
        if p < 8: a(f"s_add_u32 s{s_tmp}, s{s_tmp}, 128")

def proj_issue_w(a, S_W, s_g, s_k9, vLane, vT, s_tmp):
    vRow, vCh = vT + 1, vT + 2
    a(f"""s_lshl_b32 s{s_tmp}, s{s_k9}, 6
    v_add_u32 v{vT}, s{s_tmp}, v{vLane}
    v_mul_u32_u24 v{vRow}, 7282, v{vT}
    v_lshrrev_b32 v{vRow}, 16, v{vRow}
    v_mul_u32_u24 v{vCh}, 9, v{vRow}
    v_sub_u32 v{vCh}, v{vT}, v{vCh}
    v_and_b32 v{vT}, 3, v{vRow}
    v_bfe_u32 v{vT+3}, v{vRow}, 2, 2
    v_lshl_add_u32 v{vT}, v{vT}, 2, v{vT+3}
    v_and_b32 v{vRow}, 0x30, v{vRow}
    v_add_u32 v{vRow}, v{vRow}, v{vT}
    v_mul_u32_u24 v{vT}, 1152, v{vRow}
    v_lshl_add_u32 v{vT}, v{vCh}, 4, v{vT}
    s_mul_i32 s{s_tmp}, s{s_g}, 144
    s_lshl_b32 s{s_tmp+1}, s{s_k9}, 10
    s_add_u32 s{s_tmp+1}, s{s_tmp+1}, {W_B}""")
    for p in range(9):
        a(f"s_mov_b32 m0, s{s_tmp+1}")
        a(f"s_add_u32 s{s_tmp+1}, s{s_tmp+1}, {9*1024}" if p < 8 else "s_nop 0")
        a(f"buffer_load_dwordx4 v{vT}, {sr(S_W,4)}, s{s_tmp} offen lds")
        if p < 8: a(f"s_add_u32 s{s_tmp}, s{s_tmp}, {64*1152}")

def proj_addrs(a, s_wv, vLane, vXA, vTr, vT, s_tmp, s_colbyte, s_tbl, wbase=None, lin=False):
    if wbase is None: wbase = W_B
    if lin:
        a(f"""v_lshrrev_b32 v{vT+2}, 5, v{vLane}
        s_and_b32 s{s_tmp}, s{s_wv}, 1
        s_mul_i32 s{s_tmp}, s{s_tmp}, 36864
        s_add_u32 s{s_tmp}, s{s_tmp}, {XO_B}
        v_lshlrev_b32 v{vXA}, 4, v{vLane}
        v_add_u32 v{vXA}, s{s_tmp}, v{vXA}""")
    else:
      a(f"""v_and_b32 v{vT}, 31, v{vLane}
    v_bfe_u32 v{vT+1}, v{vLane}, 1, 3              ; key
    v_lshrrev_b32 v{vT+2}, 5, v{vLane}             ; h
    v_xor_b32 v{vT+1}, v{vT+1}, v{vT+2}
    s_and_b32 s{s_tmp}, s{s_wv}, 1
    s_lshl_b32 s{s_tmp}, s{s_tmp}, 12
    s_add_u32 s{s_tmp}, s{s_tmp}, {X_B}
    v_lshlrev_b32 v{vT}, 7, v{vT}
    v_add_u32 v{vT}, s{s_tmp}, v{vT}""")
    for s in range(0 if lin else 4):
        a(f"""v_xor_b32 v{vT+3}, {2*s}, v{vT+1}
        v_lshl_add_u32 v{vXA+s}, v{vT+3}, 4, v{vT}""")
    a(f"""v_lshlrev_b32 v{vT}, 1, v{vT+2}
    v_bfe_u32 v{vT+1}, v{vLane}, 2, 2
    v_lshl_add_u32 v{vT}, v{vT+1}, 2, v{vT}
    v_mul_u32_u24 v{vT}, 144, v{vT}
    v_bfe_u32 v{vT+1}, v{vLane}, 4, 1
    v_and_b32 v{vT+2}, 3, v{vLane}
    v_lshl_add_u32 v{vT+1}, v{vT+1}, 2, v{vT+2}    ; RG
    v_lshlrev_b32 v{vT+1}, 2, v{vT+1}
    v_lshrrev_b32 v{vT+1}, v{vT+1}, s{s_tbl}
    v_and_b32 v{vT+1}, 7, v{vT+1}
    v_lshl_add_u32 v{vT}, v{vT+1}, 3, v{vT}
    s_add_u32 s{s_tmp}, s{s_colbyte}, {wbase}
    v_add_u32 v{vTr}, s{s_tmp}, v{vT}""")

def proj_round(a, rnd, vXA, vTr, FR, ACC, lin=False):
    D = 5
    def reads(i):
        f = FR + 8 * (i % 6)
        p, s = i >> 2, i & 3
        a(f"""ds_read_b64_tr_b16 {vr(f,2)}, v{vTr} offset:{(16*i)*144}
        ds_read_b64_tr_b16 {vr(f+2,2)}, v{vTr} offset:{(16*i+1)*144}
        ds_read_b128 {vr(f+4,4)}, v{vXA if lin else vXA+s} offset:{(12*rnd+i)*1024 if lin else p*8192}""")
    for i in range(D): reads(i)
    for i in range(12):
        a(f"s_waitcnt lgkmcnt({min(3*(D-1), 3*(11-i))})")
        f = FR + 8 * (i % 6)
        c = "0" if (rnd == 0 and i == 0) else vr(ACC, 16)
        a(f"v_mfma_f32_32x32x16_bf16 {vr(ACC,16)}, {vr(f,4)}, {vr(f+4,4)}, {c}")
        if i + D < 12: reads(i + D)
    if rnd < 2:
        a(f"v_add_u32 v{vTr}, {192*144}, v{vTr}")
        for s in range(0 if lin else 4): a(f"v_add_u32 v{vXA+s}, {3*8192}, v{vXA+s}")

def decode_wg(a, s_b, s_g, s_tmp):
    a(f"""s_and_b32 s{s_b}, s2, 7
    s_lshr_b32 s{s_tmp}, s2, 3
    s_and_b32 s{s_tmp}, s{s_tmp}, 3
    s_lshl_b32 s{s_tmp}, s{s_tmp}, 3
    s_add_u32 s{s_b}, s{s_b}, s{s_tmp}
    s_lshr_b32 s{s_g}, s2, 5""")

def nib(l):
    return sum(x << (4 * i) for i, x in enumerate(l))

from gen_main import gen_main

def build(path):
    a = Asm()
    ks = []
    ks.append(gen_main(a, globals()))
    probs = check_hazards(a.lines)
    hdr = open("cdna_kernels/" + NAME + ".s.ref").read().split("; Override launch geometry")[0]
    out = hdr
    for k in ks:
        out += f"; @launch grid=({k['grid']},1,1) block=({k['block']},1,1) lds={k['lds']}\n"
    out += '.amdgcn_target "amdgcn-amd-amdhsa--gfx950"\n.text\n'
    for k in ks:
        out += f".globl {k['name']}\n.type {k['name']},@function\n"
    out += a.text()
    out += '.section .rodata,"a"\n'
    for k in ks:
        v = (k['vgpr'] + 7) // 8 * 8
        out += f""".p2align 6
.amdhsa_kernel {k['name']}
  .amdhsa_next_free_vgpr {v}
  .amdhsa_next_free_sgpr {k['sgpr']}
  .amdhsa_accum_offset {v}
  .amdhsa_group_segment_fixed_size 0
  .amdhsa_kernarg_size 136
  .amdhsa_user_sgpr_count 2
  .amdhsa_user_sgpr_kernarg_segment_ptr 1
  .amdhsa_system_sgpr_workgroup_id_x 1
.end_amdhsa_kernel
"""
    open(path, "w").write(out)
    print("wrote", path, "hazards:", len(probs), "lines:", len(a.lines))

if __name__ == "__main__":
    outp = [x for x in sys.argv[1:] if not x.startswith("--")]
    build(outp[0] if outp else "cdna_kernels/" + NAME + ".s")
```
